```python
import torch

def _softmax(x, axis=-1):
    return torch.softmax(x, dim=axis)
def _gelu(x):
    return torch.nn.functional.gelu(x, approximate="tanh")
def _silu(x):
    return torch.nn.functional.silu(x)
def _sigmoid(x):
    return torch.sigmoid(x)
def _layernorm(x, axis=-1, eps=1e-5):
    m = x.mean(dim=axis, keepdim=True)
    v = x.var(dim=axis, keepdim=True, unbiased=False)
    return (x - m) / torch.sqrt(v + eps)
def _scatter_add(tgt, idx, src, axis=0):
    return tgt.clone().index_add_(axis, idx, src)
def _segment_sum(src, seg, n):
    out = torch.zeros((n,) + src.shape[1:], dtype=src.dtype)
    return out.index_add_(0, seg, src)
def _pad(x, pw):
    flat = tuple(v for pair in reversed(pw) for v in pair)
    return torch.nn.functional.pad(x, flat)

kernel_name = 'sequential_preLN__linear_kernel_hedgehog__mixer_token_mlp__prompt'

def setup_inputs():

    _w = (lambda a: (lambda t: t.to(torch.bfloat16) if t.is_floating_point() else t)(torch.as_tensor(a)))
    def _A_setup():
        B, S, D, H = 1, 2048, 512, 32
        Dh = D // H
        return {
            "x": _w((lambda *s: torch.randn(*s, dtype=torch.bfloat16) * 0.05)(B, S, D)),
            "wqkv": _w((lambda *s: torch.randn(*s, dtype=torch.bfloat16) * 0.2)(D, 3 * D)),
            "w_phi": _w((lambda *s: torch.randn(*s, dtype=torch.bfloat16) * 0.2)(H, Dh, Dh) * (Dh ** -0.5)),
            "wo": _w((lambda *s: torch.randn(*s, dtype=torch.bfloat16) * 0.05)(D, D)),
        }
    _A_in = _A_setup()

    def _B_setup():
        B, S, D, F = 1, 2048, 512, 1792
        return {
            "x": _w((lambda *s: torch.randn(*s, dtype=torch.bfloat16) * 0.05)(B, S, D)),
            "w1": _w((lambda *s: torch.randn(*s, dtype=torch.bfloat16) * 0.4)(S, F) * (S ** -0.5)),
            "b1": _w((lambda *s: torch.randn(*s, dtype=torch.bfloat16) * 12.8)(F) * 0.02),
            "w2": _w((lambda *s: torch.randn(*s, dtype=torch.bfloat16) * 0.2)(F, S) * (F ** -0.5)),
            "b2": _w((lambda *s: torch.randn(*s, dtype=torch.bfloat16) * 3.2)(S) * 0.02),
        }
    _B_in = _B_setup()

    return {
        "A_x": _A_in["x"],
        "A_wqkv": _A_in["wqkv"],
        "A_w_phi": _A_in["w_phi"],
        "A_wo": _A_in["wo"],
        "B_x": _B_in["x"],
        "B_w1": _B_in["w1"],
        "B_b1": _B_in["b1"],
        "B_w2": _B_in["w2"],
        "B_b2": _B_in["b2"],
    }

def reference(A_x, A_wqkv, A_w_phi, A_wo, B_x, B_w1, B_b1, B_w2, B_b2):
    def _A_ref(x, wqkv, w_phi, wo):
        B, S, D = x.shape
        H = 32; Dh = D // H
        qkv = (lambda x, *d: x.permute(*d))((x @ wqkv).reshape(B, S, 3, H, Dh), 2, 0, 3, 1, 4)
        q, k, v = qkv[0], qkv[1], qkv[2]
        pq = torch.einsum("bhsd,hdf->bhsf", q, w_phi)
        pk = torch.einsum("bhsd,hdf->bhsf", k, w_phi)
        phi_q = torch.concatenate([_softmax(pq, axis=-1), _softmax(-pq, axis=-1)], axis=-1)
        phi_k = torch.concatenate([_softmax(pk, axis=-1), _softmax(-pk, axis=-1)], axis=-1)
        kv = torch.einsum("bhsf,bhsd->bhfd", phi_k, v)
        z  = torch.einsum("bhsf->bhf", phi_k)
        num = torch.einsum("bhqf,bhfd->bhqd", phi_q, kv)
        den = torch.einsum("bhqf,bhf->bhq", phi_q, z)[..., None] + 1e-6
        o = num / den
        return (lambda x, *d: x.permute(*d))(o, 0, 2, 1, 3).reshape(B, S, D) @ wo

    def _B_ref(x, w1, b1, w2, b2):
        B, S, D = x.shape
        h = _layernorm(x, axis=-1)
        u = torch.einsum("bsd,sf->bdf", h, w1) + b1
        u = _gelu(u)
        y = torch.einsum("bdf,fs->bds", u, w2) + b2
        return (lambda x, *d: x.permute(*d))(y, 0, 2, 1)

    x = A_x
    h = x + _A_ref(_layernorm(x, axis=-1), A_wqkv, A_w_phi, A_wo)
    h2 = h + _B_ref(_layernorm(h, axis=-1), B_w1, B_b1, B_w2, B_b2)
    return h2
```

```python
import re

REG_RE = re.compile(r'^(-|abs\()?([vas])(\d+)\)?$')
RNG_RE = re.compile(r'^(-)?([vas])\[(\d+):(\d+)\]$')

def regs_of(op):
    op = op.strip()
    m = REG_RE.match(op)
    if m:
        return [(m.group(2), int(m.group(3)))]
    m = RNG_RE.match(op)
    if m:
        return [(m.group(2), i) for i in range(int(m.group(3)), int(m.group(4)) + 1)]
    if op == 'vcc':
        return [('s', 'vcc')]
    if op == 'exec':
        return [('s', 'exec')]
    if op == 'm0':
        return [('s', 'm0')]
    return []

TRANS = ('v_exp_f32', 'v_log_f32', 'v_rcp_f32', 'v_rsq_f32', 'v_sqrt_f32', 'v_sin_f32', 'v_cos_f32')

def split_ops(rest):
    out, depth, cur = [], 0, ''
    for ch in rest:
        if ch == '[': depth += 1
        if ch == ']': depth -= 1
        if ch == ',' and depth == 0:
            out.append(cur.strip()); cur = ''
        else:
            cur += ch
    if cur.strip(): out.append(cur.strip())
    mods = ''
    if out:
        parts = out[-1].split()
        out[-1] = parts[0]
        mods = ' '.join(parts[1:])
    return out, mods

class Ins:
    def __init__(self, text):
        self.text = text
        t = text.split(';')[0].strip()
        sp = t.split(None, 1)
        self.mn = sp[0]
        ops, mods = split_ops(sp[1]) if len(sp) > 1 else ([], '')
        self.ops, self.mods = ops, mods
        mn = self.mn
        self.kind = 'other'
        self.w, self.r = [], []
        self.srcC = []
        self.ab = []
        R = [regs_of(o) for o in ops]
        if mn.startswith('v_mfma'):
            self.kind = 'mfma'
            self.w = R[0]; self.ab = R[1] + R[2]; self.srcC = R[3]; self.r = self.ab + self.srcC
            self.passes = 8 if '32x32' in mn else 4
        elif mn.startswith('v_cmp'):
            self.kind = 'valu'; self.w = R[0]; self.r = sum(R[1:], [])
        elif mn.startswith('v_readfirstlane') or mn.startswith('v_readlane'):
            self.kind = 'valu'; self.w = R[0]; self.r = sum(R[1:], []); self.lane_read = True
        elif mn.startswith('v_permlane'):
            self.kind = 'valu'; self.w = R[0] + R[1]; self.r = R[0] + R[1]
        elif mn.startswith('v_'):
            self.kind = 'valu'; self.w = list(R[0]); self.r = sum(R[1:], [])
            if mn.startswith('v_dot2c') or mn.startswith('v_fmac') or mn.startswith('v_pk_fmac'):
                self.r += R[0]
            if '_co_' in mn:
                self.w += R[1]; self.r = sum(R[2:], [])
            if mn.startswith('v_cndmask') and len(ops) == 3:
                self.r += [('s', 'vcc')]
            if 'dpp' in mn or 'row_' in mods or 'quad_perm' in mods:
                self.dpp = True
                self.r += R[0]
        elif mn.startswith('ds_read') or mn.startswith('ds_bpermute') or mn.startswith('ds_swizzle'):
            self.kind = 'ds'; self.w = R[0]; self.r = sum(R[1:], [])
        elif mn.startswith('ds_'):
            self.kind = 'ds'; self.r = sum(R, [])
        elif mn.startswith('buffer_load') or mn.startswith('global_load'):
            self.kind = 'vmem'
            if ' lds' in (' ' + mods) or 'load_lds' in mn:
                self.r = sum(R, []) + [('s', 'm0')]; self.dma = True
            else:
                self.w = R[0]; self.r = sum(R[1:], [])
        elif mn.startswith('buffer_store') or mn.startswith('global_store') or mn.startswith('buffer_atomic') or mn.startswith('global_atomic'):
            self.kind = 'vmem'; self.r = sum(R, []); self.store = True
            if mn.endswith('x4') or mn.endswith('x3'):
                self.wide = R[0] if mn.startswith('buffer') else R[1]
        elif mn.startswith('s_'):
            self.kind = 'salu'
            if mn in ('s_nop', 's_waitcnt', 's_barrier', 's_endpgm', 's_sleep', 's_setprio') or mn.startswith('s_cbranch') or mn == 's_branch':
                pass
            elif mn.startswith('s_cmp'):
                self.r = sum(R, [])
            else:
                self.w = R[0] if R else []; self.r = sum(R[1:], [])
                if 'saveexec' in mn: self.w = self.w + [('s', 'exec')]

class Emitter:
    def __init__(self):
        self.lines = []
        self.hist = []
        self.vm = []
        self.nops = 0
        self.uid = 0
    def raw(self, s):
        self.lines.append(s)
    def comment(self, s):
        self.lines.append('    ; ' + s)
    def label(self, name, pad=True):
        self.lines.append(name + ':')
    def newlabel(self, base):
        self.uid += 1
        return f'L_{base}_{self.uid}'
    def _need(self, ins):
        need = 0
        dist = 0
        rs = set(ins.r); ws = set(ins.w)
        for (p, st) in reversed(self.hist):
            pw = set(p.w)
            def req(n):
                nonlocal need
                need = max(need, n - dist)
            if p.kind == 'valu':
                vw = {x for x in pw if x[0] in 'va'}
                sw = {x for x in pw if x[0] == 's'}
                if ins.kind == 'mfma' and vw & rs: req(2)
                if ins.mn.startswith('v_permlane') and vw & rs: req(2)
                if getattr(ins, 'dpp', False) and vw & rs: req(2)
                if getattr(ins, 'lane_read', False) and vw & rs: req(1)
                if p.mn.split('_e')[0] in TRANS and ins.kind == 'valu' and vw & rs: req(1)
                if p.mn.startswith('v_dot2') and vw & (rs | ws):
                    if not (ins.mn == p.mn and not (vw & set(sum([regs_of(o) for o in ins.ops[1:]], [])))): req(3)
                if sw:
                    if ins.kind == 'valu' and sw & rs: req(4 if getattr(ins, 'lane_read', False) else 2)
                    if ins.kind == 'vmem' and sw & rs: req(5)
                    if ins.kind == 'salu' and sw & rs: req(1)
                    if ('s', 'exec') in sw: req(5)
            if p.kind == 'mfma':
                n = p.passes
                if ins.kind == 'mfma':
                    if pw & set(ins.ab): req(n + 4)
                    c = set(ins.srcC)
                    if pw & c and not (p.w == ins.srcC and n == ins.passes): req(n + 2)
                    if pw & ws and not (p.w == ins.w): req(n + 2)
                elif ins.kind in ('valu', 'vmem', 'ds'):
                    if pw & (rs | ws): req(n + 4)
                    if ins.kind == 'valu' and set(p.srcC) & ws: req(n - 1)
            if p.kind == 'salu' and ('s', 'm0') in pw and getattr(ins, 'dma', False): req(1)
            if p.kind == 'vmem' and getattr(p, 'wide', None) and set(p.wide) & ws: req(2)
            dist += st
            if dist > 24: break
        return need
    def __call__(self, text, tag=None):
        for line in text.strip('\n').split('\n'):
            line = line.strip()
            if not line or line.startswith(';'):
                if line: self.lines.append('    ' + line)
                continue
            if line.endswith(':'):
                self.label(line[:-1]); continue
            ins = Ins(line)
            need = self._need(ins)
            while need > 0:
                k = min(need, 16)
                self.lines.append(f'    s_nop {k-1}')
                self.hist.append((Ins(f's_nop {k-1}'), k)); self.nops += k
                need -= k
            self.lines.append('    ' + line)
            st = 1
            if ins.mn == 's_nop': st = int(ins.ops[0], 0) + 1
            self.hist.append((ins, st))
            if len(self.hist) > 64: self.hist = self.hist[-40:]
            if ins.kind == 'vmem':
                self.vm.append(tag)
    def wait_vm(self, tags, extra=''):
        if not isinstance(tags, (list, tuple, set)): tags = [tags]
        last = -1
        for i, t in enumerate(self.vm):
            if t in tags: last = i
        if last < 0:
            if extra: self(f's_waitcnt {extra}')
            return
        n = len(self.vm) - 1 - last
        assert n <= 63, n
        self(f's_waitcnt vmcnt({n}) {extra}'.strip())
        self.vm = self.vm[last + 1:]
    def wait_vm0(self, extra=''):
        self(f's_waitcnt vmcnt(0) {extra}'.strip())
        self.vm = []
    def text(self):
        return '\n'.join(self.lines) + '\n'
```

```python
import sys, os
sys.path.insert(0, os.path.dirname(os.path.abspath(__file__)))
from emit import Emitter

KNAME = "sequential_preLN__linear_kernel_hedgehog__mixer_token_mlp__prompt_kernel"

WS_EPOCH = 0
WS_FLAG = 4096
WS_FIN = 0x10000
WS_STAT = 0x40000
WS_PART = 0x100000
WS_O = 0x400000
WS_H = 0x600000
WS_HN = 0x800000
WS_G = 0xA00000
WS_STAMP = 0xC00000
WS_DUMP = 0xD00000
WS_SIZE = 0x1000000

S_X, S_WQKV, S_WS, S_WO, S_W1, S_W2, S_OUT, S_WPHI, S_B1, S_B2 = [f's[{i}:{i+3}]' for i in range(8, 48, 4)]
sW, sTB, sJ, sT, sHP, sTAG = 's48', 's49', 's50', 's51', 's52', 's53'
sDB, sFB, sSB, sG1 = 's54', 's55', 's56', 's57'
sWA, sWB = 's58', 's59'
sCNT = 's60'
sA, sB, sC, sD, sE, sF = 's61', 's62', 's63', 's64', 's65', 's66'
sONES = 's67'
sM = 's[68:69]'
STAMP0 = 74

LOG2E = 1.4426950408889634
import struct
def fbits(x):
    return '0x%08x' % struct.unpack('<I', struct.pack('<f', x))[0]

def vr(a, n=1):
    return f'v{a}' if n == 1 else f'v[{a}:{a+n-1}]'

SPIN_MAX = 0x20000


class Gen:
    def __init__(self, stamps=False, stop_after=None):
        self.e = Emitter()
        self.stamps = stamps
        self.nstamp = 0
        self.stamp_names = []
        self.stop_after = stop_after

    def stamp(self, name):
        if not self.stamps:
            return
        e = self.e
        i = self.nstamp
        self.nstamp += 1
        self.stamp_names.append(name)
        e(f's_memrealtime s[100:101]')
        e('s_waitcnt lgkmcnt(0)')
        e(f's_mov_b32 s{STAMP0+i}, s100')

    def prologue(self):
        e = self.e
        if self.stamps:
            e('s_memrealtime s[96:97]')
        e('s_cmp_ge_u32 s2, 256')
        e('s_cbranch_scc1 L_end')
        e('s_load_dwordx16 s[64:79], s[0:1], 0')
        e('s_load_dwordx8 s[80:87], s[0:1], 64')
        e('v_readfirstlane_b32 s48, v0')
        e('v_and_b32 v0, 63, v0')
        e(f's_lshr_b32 {sW}, {sW}, 6')
        e(f's_lshr_b32 {sWA}, {sW}, 1')
        e(f's_and_b32 {sWB}, {sW}, 1')
        e(f's_mov_b32 {sT}, {sWA}')
        e(f's_mov_b32 {sHP}, {sWB}')
        e('s_and_b32 s4, s2, 7')
        e('s_lshr_b32 s5, s2, 3')
        e(f's_lshr_b32 {sTB}, s5, 3')
        e(f's_lshl_b32 s6, s4, 2')
        e(f's_add_u32 {sTB}, {sTB}, s6')
        e(f's_and_b32 {sJ}, s5, 7')
        e('s_and_b32 s6, s4, 1')
        e('s_lshl_b32 s6, s6, 2')
        e('s_and_b32 s7, s5, 3')
        e(f's_add_u32 {sDB}, s6, s7')
        e('s_lshr_b32 s6, s4, 1')
        e('s_lshr_b32 s7, s5, 2')
        e(f's_mul_i32 {sFB}, s6, 7')
        e(f's_add_u32 {sFB}, {sFB}, s7')
        e(f's_lshl_b32 {sSB}, s6, 3')
        e(f's_add_u32 {sSB}, {sSB}, s7')
        e('s_cmp_lt_u32 s7, 7')
        e(f's_cselect_b32 {sG1}, 1, 0')
        e(f's_mov_b32 {sONES}, 0x3f803f80') if False else None
        e('v_and_b32 v1, 31, v0')
        e('v_lshrrev_b32 v2, 5, v0')
        e('v_lshlrev_b32 v3, 4, v0')
        e('s_waitcnt lgkmcnt(0)')
        def srd(dst, lo, size):
            d = int(dst[2:].split(':')[0])
            e(f's_mov_b32 s{d}, s{lo}')
            e(f's_mov_b32 s{d+1}, s{lo+1}')
            e(f's_mov_b32 s{d+2}, {size}')
            e(f's_mov_b32 s{d+3}, 0x20000')
        srd(S_WS, 86, WS_SIZE)
        srd(S_X, 64, 2048 * 512 * 2)
        srd(S_WQKV, 66, 512 * 1536 * 2)
        e('s_load_dword s53, s[86:87], 0')
        srd(S_WPHI, 68, 32 * 256 * 2)
        srd(S_WO, 70, 512 * 512 * 2)
        srd(S_W1, 74, 2048 * 1792 * 2)
        srd(S_B1, 76, 1792 * 2)
        srd(S_W2, 78, 1792 * 2048 * 2)
        srd(S_B2, 80, 2048 * 2)
        srd(S_OUT, 82, 2048 * 512 * 2)
        e(f's_mov_b32 {sONES}, 0x3f803f80')
        if self.stamps:
            e(f's_mov_b32 s{STAMP0}, s96')
            self.nstamp = 1
            self.stamp_names.append('start')

    def part_store_addr(self, v, tmp):
        e = self.e
        e(f's_lshl_b32 {sA}, {sJ}, 2')
        e(f's_add_u32 {sA}, {sA}, {sW}')
        e(f's_mul_i32 {sA}, {sA}, {12*8192}')
        e(f's_lshl_b32 {sB}, {sTB}, 8')
        e(f's_add_u32 {sA}, {sA}, {sB}')
        e(f's_add_u32 {sA}, {sA}, {WS_PART}')
        e(f'v_mul_u32_u24 {v}, 3, v2')
        e(f'v_lshrrev_b32 {tmp}, 3, v1')
        e(f'v_add_u32 {v}, {v}, {tmp}')
        e(f'v_lshlrev_b32 {v}, 13, {v}')
        e(f'v_and_b32 {tmp}, 7, v1')
        e(f'v_lshl_add_u32 {v}, {tmp}, 4, {v}')
        e(f'v_add_u32 {v}, {sA}, {v}')

    def o_store_soff(self, s):
        e = self.e
        e(f's_lshl_b32 {s}, {sTB}, 5')
        e(f's_lshl_b32 {sB}, {sJ}, 2')
        e(f's_add_u32 {s}, {s}, {sB}')
        e(f's_lshl_b32 {sB}, {sHP}, 1')
        e(f's_add_u32 {s}, {s}, {sB}')
        e(f's_lshl_b32 {s}, {s}, 1')
        e(f's_add_u32 {s}, {s}, {sT}')
        e(f's_lshl_b32 {s}, {s}, 10')
        e(f's_add_u32 {s}, {s}, {WS_O}')

    def fin_owner_soff(self, s):
        e = self.e
        e(f's_lshl_b32 {s}, {sJ}, 4')
        e(f's_lshr_b32 {sB}, {sTB}, 1')
        e(f's_add_u32 {s}, {s}, {sB}')
        e(f's_lshl_b32 {s}, {s}, 9')
        e(f's_add_u32 {s}, {s}, {WS_FIN}')

    def stat_store_soff(self, s):
        e = self.e
        e(f's_lshl_b32 {s}, {sTB}, 1')
        e(f's_add_u32 {s}, {s}, {sWB}')
        e(f's_lshl_b32 {s}, {s}, 4')
        e(f's_lshl_b32 {sB}, {sJ}, 1')
        e(f's_add_u32 {s}, {s}, {sB}')
        e(f's_add_u32 {s}, {s}, {sWA}')
        e(f's_lshl_b32 {s}, {s}, 8')
        e(f's_add_u32 {s}, {s}, {WS_STAT}')

    def hn_store_soff(self, s):
        e = self.e
        e(f's_lshl_b32 {s}, {sJ}, 7')
        e(f's_lshl_b32 {sB}, {sTB}, 2')
        e(f's_add_u32 {s}, {s}, {sB}')
        e(f's_lshl_b32 {sB}, {sWB}, 1')
        e(f's_add_u32 {s}, {s}, {sB}')
        e(f's_lshl_b32 {s}, {s}, 1')
        e(f's_add_u32 {s}, {s}, {sWA}')
        e(f's_lshl_b32 {s}, {s}, 10')
        e(f's_add_u32 {s}, {s}, {WS_HN}')

    def g_store_soff(self, s):
        e = self.e
        e(f's_mul_i32 {s}, {sDB}, 112')
        e(f's_lshl_b32 {sB}, {sFB}, 2')
        e(f's_add_u32 {s}, {s}, {sB}')
        e(f's_lshl_b32 {sB}, {sWA}, 1')
        e(f's_add_u32 {s}, {s}, {sB}')
        e(f's_lshl_b32 {s}, {s}, 1')
        e(f's_add_u32 {s}, {s}, {sWB}')
        e(f's_lshl_b32 {s}, {s}, 10')
        e(f's_add_u32 {s}, {s}, {WS_G}')

    EXEC_PART = ('0x0001ffff', '0x0001ffff')
    def set_exec(self, lo, hi):
        self.e(f's_mov_b32 exec_lo, {lo}')
        self.e(f's_mov_b32 exec_hi, {hi}')
    def full_exec(self):
        self.e('s_mov_b64 exec, -1')

    XR, KR, VR = 0, 49152, 98304
    MISC = 147456
    PKB = 16384
    VVB = 32768
    def p1(self):
        e = self.e
        vWP = 4; vCK, vCV, vXS, vXQ = 8, 9, 10, 11
        vWoff = 13; T0, T1 = 14, 15
        aK, aV = 16, 32
        vXa = 48; vKa = 52; vVa = 56; vXo0, vXo1 = 60, 61; vPART = 62
        WB = [64, 96]; XF = 128
        for i in range(4): e(f'v_mov_b32 v{16+i}, -1')
        self.part_store_addr(vr(vPART), vr(T0))
        e(f's_mov_b32 {sC}, 49152')
        self.set_exec(*self.EXEC_PART)
        for q in range(4):
            e(f'buffer_store_dwordx4 v[16:19], {vr(vPART)}, {S_WS}, {"0" if q < 2 else sC} offen offset:{(q&1)*128} sc1', tag='clr')
        self.full_exec()
        self.o_store_soff(sA)
        for h in range(2):
            e(f'buffer_store_dwordx4 v[16:19], v3, {S_WS}, {sA} offen offset:{h*2048} sc1', tag='clr')
        e(f'v_lshrrev_b32 {vr(T0)}, 3, v0')
        e(f'v_and_b32 {vr(T1)}, 7, v0')
        e(f's_lshl_b32 {sA}, {sW}, 4')
        e(f'v_add_u32 v63, {sA}, {vr(T0)}')
        e(f'v_lshrrev_b32 {vr(T0)}, 1, {vr(T0)}')
        e(f'v_xor_b32 {vr(vXo0)}, {vr(T1)}, {vr(T0)}')
        e(f'v_lshlrev_b32 {vr(vXo0)}, 4, {vr(vXo0)}')
        e(f'v_lshl_add_u32 {vr(vXo0)}, v63, 10, {vr(vXo0)}')
        e(f'v_xor_b32 {vr(vXo1)}, 64, {vr(vXo0)}')
        e(f'v_add_u32 {vr(vXo1)}, 8192, {vr(vXo1)}')
        e(f'v_and_b32 {vr(T0)}, 1, {vr(T0)}')
        e(f'v_lshlrev_b32 {vr(T0)}, 2, {vr(T0)}')
        e(f'v_xor_b32 {vr(T0)}, {vr(T1)}, {vr(T0)}')
        e(f'v_lshlrev_b32 {vr(T0)}, 4, {vr(T0)}')
        e(f'v_mul_u32_u24 {vr(vWoff)}, 3072, v63')
        e(f'v_add_u32 {vr(vWoff)}, {vr(vWoff)}, {vr(T0)}')
        e(f's_lshl_b32 {sD}, {sTB}, 16')
        e(f's_lshl_b32 {sE}, {sJ}, 7')
        e(f's_lshl_b32 {sF}, {sW}, 11')
        def dma_x(c, slot):
            e(f's_add_u32 m0, {sF}, {self.XR + slot*8192}')
            e(f's_add_u32 {sA}, {sD}, {c*128}')
            e(f'buffer_load_dwordx4 {vr(vXo0)}, {S_X}, {sA} offen lds', tag=('st', c))
            e(f's_add_u32 m0, {sF}, {self.XR + slot*8192 + 1024}')
            e('s_nop 0')
            e(f'buffer_load_dwordx4 {vr(vXo1)}, {S_X}, {sA} offen lds', tag=('st', c))
        def dma_w(c, sec, ldsbase, tag):
            for h in range(2):
                e(f's_add_u32 m0, {sF}, {ldsbase + h*1024}')
                e(f's_add_u32 {sA}, {sE}, {c*64*3072 + h*8*3072 + sec*1024}')
                e(f'buffer_load_dwordx4 {vr(vWoff)}, {S_WQKV}, {sA} offen lds', tag=tag)
        def dma_stage(c):
            slot = c % 6
            dma_x(c, slot)
            dma_w(c, 1, self.KR + slot*8192, ('st', c))
            dma_w(c, 2, self.VR + slot*8192, ('st', c))
        def wq_loc(cq):
            return (self.KR if cq % 2 == 0 else self.VR) + (2 + cq // 2) * 8192
        dma_stage(0)
        e(f'v_lshrrev_b32 {vr(T0)}, 4, v1')
        e(f'v_lshlrev_b32 {vr(T0)}, 9, {vr(T0)}')
        e(f'v_and_b32 {vr(T1)}, 15, v1')
        e(f'v_lshl_add_u32 {vr(T0)}, {vr(T1)}, 1, {vr(T0)}')
        e(f'v_lshl_add_u32 {vr(T0)}, v2, 7, {vr(T0)}')
        e(f's_lshl_b32 {sA}, {sJ}, 11')
        e(f's_lshl_b32 {sB}, {sHP}, 10')
        e(f's_add_u32 {sA}, {sA}, {sB}')
        for jj in range(8):
            d = (jj & 3) + 8 * (jj >> 2)
            e(f'buffer_load_ushort v{96+jj}, {vr(T0)}, {S_WPHI}, {sA} offen offset:{d*32}', tag='wphi')
        for c in range(1, 6):
            dma_stage(c)
        self.fin_owner_soff(sA)
        lf = e.newlabel('nofin')
        e(f's_and_b32 {sB}, {sTB}, 1')
        e(f's_lshl_b32 {sC}, {sB}, 7')
        e(f's_add_u32 {sB}, {sB}, {sW}')
        e(f's_cmp_eq_u32 {sW}, 0')
        e(f's_cselect_b32 {sC}, {sC}, 256')
        e(f's_cselect_b32 {sB}, 1, {sB}')
        e(f's_add_u32 {sA}, {sA}, {sC}')
        e(f's_cmp_eq_u32 {sB}, 1')
        e(f's_cselect_b32 {sA}, {sA}, {WS_SIZE}')
        self.set_exec('0xff', '0')
        e(f'buffer_store_dwordx4 v[16:19], v3, {S_WS}, {sA} offen sc1', tag='clr2')
        self.full_exec()
        self.stat_store_soff(sA)
        self.set_exec('0xffff', '0')
        e(f'buffer_store_dwordx4 v[16:19], v3, {S_WS}, {sA} offen sc1', tag='clr2')
        self.full_exec()
        self.hn_store_soff(sA)
        for u in range(2):
            e(f'buffer_store_dwordx4 v[16:19], v3, {S_WS}, {sA} offen offset:{u*2048} sc1', tag='clr2')
        self.g_store_soff(sA)
        e(f's_cmp_eq_u32 {sG1}, 1')
        e(f's_cselect_b32 {sA}, {sA}, {WS_SIZE}')
        for u in range(2):
            e(f'buffer_store_dwordx4 v[16:19], v3, {S_WS}, {sA} offen offset:{u*2048} sc1', tag='clr2')
        e(f's_lshl_b32 {sA}, {sW}, 9')
        e(f'v_lshlrev_b32 {vr(T0)}, 3, v0')
        e(f'v_add_u32 {vr(T0)}, {sA}, {vr(T0)}')
        e(f'v_add_u32 {vr(T0)}, {self.MISC}, {vr(T0)}')
        e('v_mov_b32 v20, 0')
        e('v_mov_b32 v21, 0')
        e(f'ds_write_b64 {vr(T0)}, v[20:21]')
        e(f'v_and_b32 {vr(T0)}, 3, v0')
        e(f'v_lshlrev_b32 {vr(T0)}, 9, {vr(T0)}')
        e(f'v_add_u32 {vr(T0)}, {self.MISC + 2048}, {vr(T0)}')
        e(f'v_mov_b32 v22, {sONES}')
        e(f'v_mov_b32 v23, {sONES}')
        e(f'ds_write_b64 {vr(T0)}, v[22:23]')
        e(f's_lshl_b32 {sA}, {sHP}, 1')
        e(f's_add_u32 {sA}, {sA}, {sT}')
        e(f'v_bfe_u32 {vr(T0)}, v1, 1, 3')
        e(f'v_xor_b32 {vr(T0)}, {vr(T0)}, v2')
        e(f's_lshl_b32 {sB}, {sA}, 1')
        e(f'v_xor_b32 {vr(T0)}, {sB}, {vr(T0)}')
        e(f'v_lshlrev_b32 {vr(T0)}, 4, {vr(T0)}')
        e(f'v_lshl_add_u32 {vr(T0)}, v1, 7, {vr(T0)}')
        e(f's_lshl_b32 {sB}, {sT}, 12')
        e(f'v_add_u32 {vr(vXa)}, {sB}, {vr(T0)}')
        for k in range(1, 4):
            e(f'v_xor_b32 {vr(vXa+k)}, {k*32}, {vr(vXa)}')
        self.tr_addr(vr(T0), vr(T1), 'v63', natural=True)
        e(f's_lshl_b32 {sB}, {sHP}, 6')
        e(f'v_xor_b32 {vr(T0)}, {sB}, {vr(T0)}')
        e(f's_lshl_b32 {sB}, {sA}, 11')
        e(f'v_add_u32 {vr(T0)}, {sB}, {vr(T0)}')
        for k in range(4):
            e(f'v_xor_b32 {vr(T1)}, {k*2048}, {vr(T0)}')
            e(f'v_add_u32 {vr(vKa+k)}, {self.KR}, {vr(T1)}')
            e(f'v_add_u32 {vr(vVa+k)}, {self.VR}, {vr(T1)}')
        for r in (vCK, vCV, vXS, vXQ):
            e(f'v_mov_b32 {vr(r)}, 0')

        def reads(c):
            slot = c % 6
            wb = WB[c % 2]
            out = []
            for k in range(4):
                out.append(f'ds_read_b128 {vr(XF + 16*c + 4*k, 4)}, {vr(vXa+k)} offset:{slot*8192}')
                for a in range(2):
                    out.append(f'ds_read_b64_tr_b16 {vr(wb + 4*k + 2*a, 2)}, {vr(vKa+k)} offset:{slot*8192 + a*512}')
                for a in range(2):
                    out.append(f'ds_read_b64_tr_b16 {vr(wb + 16 + 4*k + 2*a, 2)}, {vr(vVa+k)} offset:{slot*8192 + a*512}')
            return out
        def mf(acc, A, B, first):
            return f'v_mfma_f32_32x32x16_bf16 {vr(acc,16)}, {vr(A,4)}, {vr(B,4)}, {"0" if first else vr(acc,16)}'

        e.wait_vm(['clr', 'wphi', ('st', 0)], 'lgkmcnt(0)')
        for i in range(4):
            e(f'v_lshl_or_b32 {vr(vWP+i)}, v{96+2*i+1}, 16, v{96+2*i}')
        e(f's_add_u32 {sTAG}, {sTAG}, 1')
        e('s_barrier')
        self.stamp('p1_first')
        for r in reads(0): e(r)
        e(f's_lshr_b32 {sA}, s2, 4')
        e(f's_lshl_b32 {sA}, {sA}, 8')
        e(f's_and_b32 {sB}, s2, 15')
        e(f's_lshl_b32 {sB}, {sB}, 2')
        e(f's_add_u32 {sA}, {sA}, {sB}')
        e(f's_add_u32 {sA}, {sA}, {WS_FLAG}')
        e(f's_cmp_eq_u32 {sW}, 0')
        e(f's_cselect_b32 {sA}, {sA}, {WS_SIZE}')
        e(f'v_mov_b32 {vr(T0)}, {sTAG}')
        e(f'v_mov_b32 {vr(T1)}, 0')
        e('s_mov_b64 exec, 1')
        e(f'buffer_store_dword {vr(T0)}, {vr(T1)}, {S_WS}, {sA} offen sc1', tag='flag')
        self.full_exec()
        for c in range(8):
            wb = WB[c % 2]
            e('s_waitcnt lgkmcnt(0)')
            m = []
            for k in range(4):
                m.append(mf(aK, wb + 4*k, XF + 16*c + 4*k, c == 0 and k == 0))
                m.append(mf(aV, wb + 16 + 4*k, XF + 16*c + 4*k, c == 0 and k == 0))
            e(m[0])
            if c in (1, 2):
                dma_x(c + 5, (c - 1) % 6)
                e(m[1])
                dma_w(c + 5, 1, self.KR + (c - 1) * 8192, ('st', c + 5))
                e(m[2])
                dma_w(c + 5, 2, self.VR + (c - 1) * 8192, ('st', c + 5))
                e(m[3])
            elif 3 <= c <= 6:
                cq = 2 * (c - 3)
                e(m[1])
                dma_w(cq, 0, wq_loc(cq), 'wq')
                e(m[2])
                dma_w(cq + 1, 0, wq_loc(cq + 1), 'wq')
                e(m[3])
            else:
                e(m[1]); e(m[2]); e(m[3])
            if c < 7:
                e.wait_vm([('st', c + 1)])
                e('s_barrier')
                rd = reads(c + 1)
                for i in range(4):
                    e(m[4 + i])
                    for r in rd[5*i:5*i+5]: e(r)
            else:
                for i in range(4): e(m[4 + i])
            for k in (0, 2):
                for i in range(4):
                    e(f'v_dot2c_f32_bf16 {vr(vCK)}, {sONES}, {vr(wb + 4*k + i)}')
                    e(f'v_dot2c_f32_bf16 {vr(vCV)}, {sONES}, {vr(wb + 16 + 4*k + i)}')
            for k in (0, 1):
                for i in range(4):
                    x = vr(XF + 16*c + 4*k + i)
                    e(f'v_dot2c_f32_bf16 {vr(vXS)}, {sONES}, {x}')
                    e(f'v_dot2c_f32_bf16 {vr(vXQ)}, {x}, {x}')
        self.stamp('p1_mfma')
        e(f's_lshl_b32 {sA}, {sHP}, 7')
        e(f's_add_u32 {sA}, {sA}, {self.MISC}')
        e(f'v_lshl_add_u32 {vr(T0)}, v1, 2, {sA}')
        e(f's_lshl_b32 {sB}, {sT}, 7')
        e(f's_add_u32 {sB}, {sB}, {self.MISC + 512}')
        e(f'v_lshl_add_u32 {vr(T1)}, v1, 2, {sB}')
        e(f'ds_add_f32 {vr(T0)}, {vr(vCK)}')
        e(f'ds_add_f32 {vr(T0)}, {vr(vCV)} offset:256')
        e(f'ds_add_f32 {vr(T1)}, {vr(vXS)}')
        e(f'ds_add_f32 {vr(T1)}, {vr(vXQ)} offset:256')
        e(f'v_lshl_add_u32 {vr(T0)}, v2, 4, {sA}')
        e('s_waitcnt lgkmcnt(0)')
        e('s_barrier')
        CK, CV = 64, 80
        e(f'ds_read_b32 {vr(vXS)}, {vr(T1)}')
        e(f'ds_read_b32 {vr(vXQ)}, {vr(T1)} offset:256')
        for q in range(4): e(f'ds_read_b128 {vr(CK + 4*q, 4)}, {vr(T0)} offset:{q*32}')
        for q in range(4): e(f'ds_read_b128 {vr(CV + 4*q, 4)}, {vr(T0)} offset:{256 + q*32}')
        WA1, WA2 = 96, 100
        e('v_cmp_gt_u32 vcc, 16, v1')
        for i in range(4):
            e(f'v_cndmask_b32 {vr(WA1+i)}, 0, {vr(vWP+i)}, vcc')
        for i in range(4):
            e(f'v_sub_u32 {vr(WA2+i)}, {vr(vWP+i)}, {vr(WA1+i)}')
        vNM, vRS, vCS = 8, 10, 12
        e('s_waitcnt lgkmcnt(8)')
        e(f'v_mul_f32 {vr(vNM)}, {fbits(-1.0/512)}, {vr(vXS)}')
        e(f'v_mul_f32 {vr(T1)}, {vr(vNM)}, {vr(vNM)}')
        e(f's_mov_b32 {sC}, {fbits(1.0/512)}')
        e(f'v_fma_f32 {vr(T1)}, {vr(vXQ)}, {sC}, -{vr(T1)}')
        e(f'v_max_f32 {vr(T1)}, 0, {vr(T1)}')
        e(f'v_add_f32 {vr(T1)}, {fbits(1e-5)}, {vr(T1)}')
        e(f'v_rsq_f32 {vr(vRS)}, {vr(T1)}')
        e('s_waitcnt lgkmcnt(4)')
        for i in range(8):
            e(f'v_pk_fma_f32 {vr(aK+2*i,2)}, {vr(CK+2*i,2)}, {vr(vNM,2)}, {vr(aK+2*i,2)} op_sel_hi:[1,0,1]')
        KF = 104
        for i in range(8):
            e(f'v_cvt_pk_bf16_f32 {vr(KF+i)}, {vr(aK+2*i)}, {vr(aK+2*i+1)}')
        e(f'v_mul_f32 {vr(vCS)}, {fbits(LOG2E)}, {vr(vRS)}')
        P = 16
        e(f'v_mfma_f32_32x32x16_bf16 {vr(P,16)}, {vr(WA1,4)}, {vr(KF,4)}, 0')
        e(f'v_mfma_f32_32x32x16_bf16 {vr(P,16)}, {vr(WA2,4)}, {vr(KF+4,4)}, {vr(P,16)}')
        vPW0, vPW1, vVW = 48, 49, 50
        self.pk_write_addr(vr(vPW0), vr(vPW1), vr(T0))
        e(f's_lshl_b32 {sA}, {sHP}, 13')
        e(f's_lshl_b32 {sB}, {sT}, 11')
        e(f's_add_u32 {sA}, {sA}, {sB}')
        e(f's_add_u32 {sA}, {sA}, {self.PKB}')
        e(f'v_add_u32 {vr(vPW0)}, {sA}, {vr(vPW0)}')
        e(f'v_add_u32 {vr(vPW1)}, {sA}, {vr(vPW1)}')
        e(f'v_bfe_u32 {vr(T0)}, v1, 2, 1')
        e(f'v_xor_b32 {vr(T0)}, {vr(T0)}, v2')
        e(f'v_lshlrev_b32 {vr(T0)}, 4, {vr(T0)}')
        e(f'v_lshl_add_u32 {vr(T0)}, v1, 5, {vr(T0)}')
        e(f's_lshl_b32 {sA}, {sHP}, 12')
        e(f's_lshl_b32 {sB}, {sT}, 10')
        e(f's_add_u32 {sA}, {sA}, {sB}')
        e(f's_add_u32 {sA}, {sA}, {self.VVB}')
        e(f'v_add_u32 {vr(vVW)}, {sA}, {vr(T0)}')
        e('s_waitcnt lgkmcnt(0)')
        for i in range(8):
            e(f'v_pk_fma_f32 {vr(aV+2*i,2)}, {vr(CV+2*i,2)}, {vr(vNM,2)}, {vr(aV+2*i,2)} op_sel_hi:[1,0,1]')
        for i in range(8):
            e(f'v_pk_mul_f32 {vr(aV+2*i,2)}, {vr(aV+2*i,2)}, {vr(vRS,2)} op_sel_hi:[1,0]')
        VF = 112
        for i in range(8):
            e(f'v_cvt_pk_bf16_f32 {vr(VF+i)}, {vr(aV+2*i)}, {vr(aV+2*i+1)}')
        e(f'ds_write_b128 {vr(vVW)}, {vr(VF,4)}')
        e(f'ds_write_b128 {vr(vVW)}, {vr(VF+4,4)} offset:2048')
        FK = 104
        self.softmax(P, 32, 64, vCS, FK)
        e(f'ds_write_b128 {vr(vPW0)}, {vr(FK,4)}')
        e(f'ds_write_b128 {vr(vPW1)}, {vr(FK+4,4)}')
        e(f'ds_write_b128 {vr(vPW0)}, {vr(FK+8,4)} offset:4096')
        e(f'ds_write_b128 {vr(vPW1)}, {vr(FK+12,4)} offset:4096')
        vPR0, vPR1, vVR0, vVR1 = 48, 49, 50, 51
        self.pk_read_addr(vr(64), vr(65), vr(T0), vr(T1))
        e(f's_lshl_b32 {sA}, {sW}, 12')
        e(f's_add_u32 {sA}, {sA}, {self.PKB}')
        e(f'v_add_u32 {vr(66)}, {sA}, {vr(64)}')
        e(f'v_add_u32 {vr(67)}, {sA}, {vr(65)}')
        e(f'v_bfe_u32 {vr(T0)}, v0, 2, 2')
        e(f'v_lshl_add_u32 {vr(T0)}, v2, 3, {vr(T0)}')
        e(f'v_lshlrev_b32 {vr(T0)}, 5, {vr(T0)}')
        e(f'v_and_b32 {vr(T1)}, 1, v0')
        e(f'v_lshl_add_u32 {vr(T0)}, {vr(T1)}, 4, {vr(T0)}')
        e(f'v_bfe_u32 {vr(T1)}, v0, 1, 1')
        e(f'v_lshl_add_u32 {vr(T0)}, {vr(T1)}, 3, {vr(T0)}')
        e(f's_lshl_b32 {sA}, {sW}, 11')
        e(f's_add_u32 {sA}, {sA}, {self.VVB}')
        e(f'v_add_u32 {vr(68)}, {sA}, {vr(T0)}')
        e(f'v_xor_b32 {vr(69)}, 16, {vr(68)}')
        e(f'v_add_u32 {vr(69)}, 128, {vr(69)}')
        e(f'v_mov_b32 {vr(T0)}, {self.MISC + 2048}')
        e(f'v_cndmask_b32 {vr(68)}, {vr(T0)}, {vr(68)}, vcc')
        e(f'v_cndmask_b32 {vr(69)}, {vr(T0)}, {vr(69)}, vcc')
        e.wait_vm(['wq', 'clr2'], 'lgkmcnt(0)')
        e('s_barrier')
        AF, BF = 72, 16
        for u in range(4):
            e(f'ds_read_b64_tr_b16 {vr(AF+4*u,2)}, v66 offset:{u*1024}')
            e(f'ds_read_b64_tr_b16 {vr(AF+4*u+2,2)}, v67 offset:{u*1024}')
            e(f'ds_read_b64_tr_b16 {vr(BF+4*u,2)}, v68 offset:{u*512}')
            e(f'ds_read_b64_tr_b16 {vr(BF+4*u+2,2)}, v69 offset:{u*512}')
        for u in range(4):
            e(f's_waitcnt lgkmcnt({12-4*u})')
            e(f'v_mfma_f32_32x32x16_bf16 {vr(32,16)}, {vr(AF+4*u,4)}, {vr(BF+4*u,4)}, {"0" if u == 0 else vr(32,16)}')
        e(f's_mov_b32 {sC}, 49152')
        self.set_exec(*self.EXEC_PART)
        for q in range(4):
            e(f'buffer_store_dwordx4 {vr(32+4*q,4)}, {vr(vPART)}, {S_WS}, {"0" if q < 2 else sC} offen offset:{(q&1)*128} sc1', tag='part')
        self.full_exec()
        self.stamp('p1_pub')
        vFL = 124
        e(f'v_lshrrev_b32 {vr(T0)}, 2, v0')
        e(f'v_lshlrev_b32 {vr(T0)}, 8, {vr(T0)}')
        e(f'v_and_b32 {vr(T1)}, 3, v0')
        e(f'v_lshl_add_u32 v63, {vr(T1)}, 4, {vr(T0)}')
        e(f'v_add_u32 v63, {WS_FLAG}, v63')
        e(f'buffer_load_dwordx4 {vr(vFL,4)}, v63, {S_WS}, 0 offen sc1', tag='fl')
        aQ = 16; vCQ = 14
        QB = [64, 80]
        def qr(cq):
            base = vKa if cq % 2 == 0 else vVa
            off = (2 + cq // 2) * 8192
            return [f'ds_read_b64_tr_b16 {vr(QB[cq%2] + 4*k + 2*a, 2)}, {vr(base+k)} offset:{off + a*512}' for k in range(4) for a in range(2)]
        e(f'v_mov_b32 {vr(vCQ)}, 0')
        for r in qr(0): e(r)
        for cq in range(8):
            e('s_waitcnt lgkmcnt(0)')
            rd = qr(cq + 1) if cq < 7 else []
            for k in range(4):
                e(mf(aQ, QB[cq%2] + 4*k, XF + 16*cq + 4*k, cq == 0 and k == 0))
                for r in rd[2*k:2*k+2]: e(r)
            for i in range(16):
                e(f'v_dot2c_f32_bf16 {vr(vCQ)}, {sONES}, {vr(QB[cq%2] + i)}')
        e(f's_lshl_b32 {sA}, {sW}, 7')
        e(f's_add_u32 {sA}, {sA}, {self.MISC + 1024}')
        e(f'v_lshl_add_u32 {vr(T1)}, v1, 2, {sA}')
        e(f'ds_add_f32 {vr(T1)}, {vr(vCQ)}')
        e(f'v_lshl_add_u32 {vr(T1)}, v2, 4, {sA}')
        e('s_waitcnt lgkmcnt(0)')
        for q in range(4): e(f'ds_read_b128 {vr(64 + 4*q, 4)}, {vr(T1)} offset:{q*32}')
        self.stamp('q_mfma')
        lp, ld = e.newlabel('ichk'), e.newlabel('ichkd')
        e(f's_mov_b32 {sCNT}, 0')
        e.label(lp)
        e.wait_vm0()
        e(f'v_cmp_ne_u32 vcc, {sTAG}, {vr(vFL)}')
        e(f'v_cmp_ne_u32 {sM}, {sTAG}, {vr(vFL+1)}')
        e(f's_or_b64 vcc, vcc, {sM}')
        e(f'v_cmp_ne_u32 {sM}, {sTAG}, {vr(vFL+2)}')
        e(f's_or_b64 vcc, vcc, {sM}')
        e(f'v_cmp_ne_u32 {sM}, {sTAG}, {vr(vFL+3)}')
        e(f's_or_b64 vcc, vcc, {sM}')
        e(f's_cbranch_vccz {ld}')
        e(f'buffer_load_dwordx4 {vr(vFL,4)}, v63, {S_WS}, 0 offen sc1')
        e(f's_add_u32 {sCNT}, {sCNT}, 1')
        e(f's_cmp_lt_u32 {sCNT}, {SPIN_MAX}')
        e(f's_cbranch_scc1 {lp}')
        e.wait_vm0()
        e.label(ld)
        e.vm = []
        le = e.newlabel('noep')
        e(f's_lshl_b32 {sA}, s2, 2')
        e(f's_add_u32 {sA}, {sA}, {sW}')
        e(f's_cmp_eq_u32 {sA}, 3')
        e(f's_cbranch_scc0 {le}')
        e(f'v_mov_b32 {vr(vFL)}, {sTAG}')
        e(f'v_mov_b32 {vr(vFL+1)}, 0')
        e('s_mov_b64 exec, 1')
        e(f'buffer_store_dword {vr(vFL)}, {vr(vFL+1)}, {S_WS}, 0 offen sc1')
        self.full_exec()
        e.label(le)
        self.stamp('ichk')
        self.owner_duty()
        self.stamp('owner')
        e('s_waitcnt lgkmcnt(0)')
        for i in range(8):
            e(f'v_pk_fma_f32 {vr(aQ+2*i,2)}, {vr(64+2*i,2)}, {vr(vNM,2)}, {vr(aQ+2*i,2)} op_sel_hi:[1,0,1]')
        for i in range(8):
            e(f'v_cvt_pk_bf16_f32 {vr(KF+i)}, {vr(aQ+2*i)}, {vr(aQ+2*i+1)}')
        e(f'v_mfma_f32_32x32x16_bf16 {vr(P,16)}, {vr(WA1,4)}, {vr(KF,4)}, 0')
        e(f'v_mfma_f32_32x32x16_bf16 {vr(P,16)}, {vr(WA2,4)}, {vr(KF+4,4)}, {vr(P,16)}')
        vFR = 48
        e(f'v_min_u32 {vr(T0)}, 16, v1')
        e(f'v_lshlrev_b32 {vr(T0)}, 4, {vr(T0)}')
        e(f'v_lshl_add_u32 {vr(vFR)}, v2, 9, {vr(T0)}')
        e(f's_lshl_b32 {sD}, {sJ}, 13')
        e(f's_lshl_b32 {sB}, {sHP}, 12')
        e(f's_add_u32 {sD}, {sD}, {sB}')
        e(f's_add_u32 {sD}, {sD}, {WS_FIN}')
        self.o_store_soff(sE)
        self.softmax(P, 32, 64, vCS, FK)
        self.stamp('q_soft')
        KV = 64
        lp, ld = e.newlabel('fin'), e.newlabel('find')
        e(f's_mov_b32 {sCNT}, 0')
        e.label(lp)
        for i in range(4):
            e(f'buffer_load_dwordx4 {vr(KV+4*i,4)}, {vr(vFR)}, {S_WS}, {sD} offen offset:{i*1024} sc1')
        e.wait_vm0()
        e(f'v_max3_u32 {vr(T0)}, {vr(KV)}, {vr(KV+4)}, {vr(KV+8)}')
        e(f'v_max_u32 {vr(T0)}, {vr(T0)}, {vr(KV+12)}')
        e(f'v_cmp_eq_u32 vcc, -1, {vr(T0)}')
        e(f's_cbranch_vccz {ld}')
        e(f's_add_u32 {sCNT}, {sCNT}, 1')
        e(f's_cmp_lt_u32 {sCNT}, {SPIN_MAX}')
        e(f's_cbranch_scc1 {lp}')
        e.label(ld)
        self.stamp('fin')
        D0, D1 = 16, 32
        e(f'v_mfma_f32_32x32x16_bf16 {vr(D0,16)}, {vr(KV,4)}, {vr(FK,4)}, 0')
        e(f'v_mfma_f32_32x32x16_bf16 {vr(D1,16)}, {vr(KV+8,4)}, {vr(FK+8,4)}, 0')
        e(f'v_mfma_f32_32x32x16_bf16 {vr(D0,16)}, {vr(KV+4,4)}, {vr(FK+4,4)}, {vr(D0,16)}')
        e(f'v_mfma_f32_32x32x16_bf16 {vr(D1,16)}, {vr(KV+12,4)}, {vr(FK+12,4)}, {vr(D1,16)}')
        for h, D in enumerate((D0, D1)):
            e(f'v_add_f32 {vr(D+8)}, {fbits(1e-6)}, {vr(D+8)}')
            e(f'v_rcp_f32 {vr(D+8)}, {vr(D+8)}')
            for i in range(4):
                e(f'v_pk_mul_f32 {vr(D+2*i,2)}, {vr(D+2*i,2)}, {vr(D+8,2)} op_sel_hi:[1,0]')
            for i in range(4):
                e(f'v_cvt_pk_bf16_f32 {vr(D+12+i)}, {vr(D+2*i)}, {vr(D+2*i+1)}')
            e(f'buffer_store_dwordx4 {vr(D+12,4)}, v3, {S_WS}, {sE} offen offset:{h*2048} sc1', tag='o')
        self.stamp('o_pub')

    def tr_addr(self, v, t1, t2, natural):
        e = self.e
        e(f'v_bfe_u32 {t1}, v0, 2, 2')
        e(f'v_lshl_add_u32 {v}, v2, {3 if natural else 2}, {t1}')
        e(f'v_lshlrev_b32 {v}, 7, {v}')
        e(f'v_lshrrev_b32 {t1}, 1, {t1}')
        e(f'v_lshl_add_u32 {v}, {t1}, 6, {v}')
        e(f'v_bfe_u32 {t1}, v0, 4, 1')
        e(f'v_lshl_add_u32 {v}, {t1}, 5, {v}')
        e(f'v_and_b32 {t1}, 3, v0')
        e(f'v_lshl_add_u32 {v}, {t1}, 3, {v}')

    def pk_write_addr(self, v0_, v1_, t):
        e = self.e
        e(f'v_bfe_u32 {t}, v1, 1, 2')
        e(f'v_lshlrev_b32 {v0_}, 1, v2')
        e(f'v_xor_b32 {t}, {t}, {v0_}')
        e(f'v_lshlrev_b32 {t}, 4, {t}')
        e(f'v_lshl_add_u32 {v0_}, v1, 6, {t}')
        e(f'v_xor_b32 {v1_}, 16, {v0_}')

    def pk_read_addr(self, v0_, v1_, t0, t1):
        e = self.e
        e(f'v_bfe_u32 {t0}, v0, 2, 2')
        e(f'v_lshl_add_u32 {v0_}, v2, 3, {t0}')
        e(f'v_lshlrev_b32 {v0_}, 6, {v0_}')
        e(f'v_lshrrev_b32 {t0}, 1, {t0}')
        e(f'v_bfe_u32 {t1}, v0, 4, 1')
        e(f'v_xor_b32 {t0}, {t0}, {t1}')
        e(f'v_and_b32 {t1}, 1, v0')
        e(f'v_lshl_add_u32 {t0}, {t1}, 1, {t0}')
        e(f'v_lshl_add_u32 {v0_}, {t0}, 4, {v0_}')
        e(f'v_bfe_u32 {t1}, v0, 1, 1')
        e(f'v_lshl_add_u32 {v0_}, {t1}, 3, {v0_}')
        e(f'v_xor_b32 {v1_}, 32, {v0_}')
        e(f'v_add_u32 {v1_}, 256, {v1_}')

    def softmax(self, P, N, T, vCS, F):
        e = self.e
        mxA, mxB, mnA, mnB = T, T + 2, T + 4, T + 6
        t0, t1 = T + 1, T + 3
        for (dst, base, op) in ((mxA, P, 'max'), (mxB, P + 8, 'max'), (mnA, P, 'min'), (mnB, P + 8, 'min')):
            e(f'v_{op}3_f32 {vr(dst)}, {vr(base)}, {vr(base+1)}, {vr(base+2)}')
        for (dst, base, op) in ((mxA, P, 'max'), (mxB, P + 8, 'max'), (mnA, P, 'min'), (mnB, P + 8, 'min')):
            e(f'v_{op}3_f32 {vr(dst)}, {vr(dst)}, {vr(base+3)}, {vr(base+4)}')
        for (dst, base, op) in ((mxA, P, 'max'), (mxB, P + 8, 'max'), (mnA, P, 'min'), (mnB, P + 8, 'min')):
            e(f'v_{op}3_f32 {vr(dst)}, {vr(dst)}, {vr(base+5)}, {vr(base+6)}')
        for (dst, base, op) in ((mxA, P, 'max'), (mxB, P + 8, 'max'), (mnA, P, 'min'), (mnB, P + 8, 'min')):
            e(f'v_{op}_f32 {vr(dst)}, {vr(dst)}, {vr(base+7)}')
        def allred2(a, b, c, d, op1, op2):
            e(f'v_permlane32_swap_b32 {vr(a)}, {vr(b)}')
            e(f'v_permlane32_swap_b32 {vr(c)}, {vr(d)}')
            e(f'v_{op1}_f32 {vr(a)}, {vr(a)}, {vr(b)}')
            e(f'v_{op2}_f32 {vr(c)}, {vr(c)}, {vr(d)}')
            e(f'v_mov_b32 {vr(b)}, {vr(a)}')
            e(f'v_mov_b32 {vr(d)}, {vr(c)}')
            e(f'v_permlane32_swap_b32 {vr(a)}, {vr(b)}')
            e(f'v_permlane32_swap_b32 {vr(c)}, {vr(d)}')
        allred2(mxA, mxB, mnA, mnB, 'max', 'min')
        for r in (mxA, mxB, mnA, mnB):
            e(f'v_mul_f32 {vr(r)}, {vr(vCS)}, {vr(r)}')
        for h, (mx, mn) in enumerate(((mxA, mnA), (mxB, mnB))):
            for i in range(4):
                p = P + 8*h + 2*i
                e(f'v_pk_fma_f32 {vr(N+8*h+2*i,2)}, {vr(p,2)}, {vr(vCS,2)}, {vr(mn,2)} op_sel_hi:[1,0,0] neg_lo:[0,1,0] neg_hi:[0,1,0]')
            for i in range(4):
                p = P + 8*h + 2*i
                e(f'v_pk_fma_f32 {vr(p,2)}, {vr(p,2)}, {vr(vCS,2)}, {vr(mx,2)} op_sel_hi:[1,0,0] neg_lo:[0,0,1] neg_hi:[0,0,1]')
        for i in range(16):
            e(f'v_exp_f32 {vr(P+i)}, {vr(P+i)}')
        for i in range(16):
            e(f'v_exp_f32 {vr(N+i)}, {vr(N+i)}')
        sums = ((T, P), (T + 2, P + 8), (T + 4, N), (T + 6, N + 8))
        for k, (s, b) in enumerate(sums):
            e(f'v_pk_add_f32 {vr(s,2)}, {vr(b,2)}, {vr(b+2,2)}')
            e(f'v_pk_add_f32 {vr(T+8+2*k,2)}, {vr(b+4,2)}, {vr(b+6,2)}')
        for k, (s, b) in enumerate(sums):
            e(f'v_pk_add_f32 {vr(s,2)}, {vr(s,2)}, {vr(T+8+2*k,2)}')
        for k, (s, b) in enumerate(sums):
            e(f'v_add_f32 {vr(s)}, {vr(s)}, {vr(s+1)}')
        allred2(T, T + 2, T + 4, T + 6, 'add', 'add')
        for k in range(4):
            e(f'v_rcp_f32 {vr(T+2*k)}, {vr(T+2*k)}')
        outs = (F, F + 8, F + 4, F + 12)
        for k, (s, b) in enumerate(sums):
            for i in range(4):
                e(f'v_pk_mul_f32 {vr(b+2*i,2)}, {vr(b+2*i,2)}, {vr(s,2)} op_sel_hi:[1,0]')
        for k, (s, b) in enumerate(sums):
            for i in range(4):
                e(f'v_cvt_pk_bf16_f32 {vr(outs[k]+i)}, {vr(b+2*i)}, {vr(b+2*i+1)}')

    def owner_duty(self):
        e = self.e
        R = 128
        lz, lend = e.newlabel('ownz'), e.newlabel('ownend')
        e(f's_lshl_b32 {sA}, {sJ}, 4')
        e(f's_lshr_b32 {sB}, {sTB}, 1')
        e(f's_add_u32 {sA}, {sA}, {sB}')
        e(f's_mul_i32 {sA}, {sA}, {3*8192}')
        e(f's_add_u32 {sA}, {sA}, {WS_PART}')
        self.fin_owner_soff(sD)
        e(f's_and_b32 {sC}, {sTB}, 1')
        e(f's_cmp_eq_u32 {sW}, 0')
        e(f's_cbranch_scc0 {lz}')
        e(f's_lshl_b32 {sB}, {sC}, 13')
        e(f's_add_u32 {sA}, {sA}, {sB}')
        e(f's_add_u32 {sE}, {sA}, 4096')
        e(f's_lshl_b32 {sB}, {sC}, 7')
        e(f's_add_u32 {sD}, {sD}, {sB}')
        lp, ld = e.newlabel('own'), e.newlabel('ownd')
        e(f's_mov_b32 {sCNT}, 0')
        e.label(lp)
        for i in range(8):
            e(f'buffer_load_dwordx4 {vr(R+4*i,4)}, v3, {S_WS}, {sA if i < 4 else sE} offen offset:{(i&3)*1024} sc1')
        e.wait_vm0()
        e(f'v_max3_u32 v14, {vr(R)}, {vr(R+4)}, {vr(R+8)}')
        e(f'v_max3_u32 v15, {vr(R+12)}, {vr(R+16)}, {vr(R+20)}')
        e(f'v_max3_u32 v14, v14, {vr(R+24)}, {vr(R+28)}')
        e(f'v_max_u32 v14, v14, v15')
        e('v_cmp_eq_u32 vcc, -1, v14')
        e(f's_cbranch_vccz {ld}')
        e(f's_add_u32 {sCNT}, {sCNT}, 1')
        e(f's_cmp_lt_u32 {sCNT}, {SPIN_MAX}')
        e(f's_cbranch_scc1 {lp}')
        e.label(ld)
        for step in (16, 8, 4):
            for i in range(0, step, 2):
                e(f'v_pk_add_f32 {vr(R+i,2)}, {vr(R+i,2)}, {vr(R+step+i,2)}')
        for sw in ('32', '16'):
            for i in range(4): e(f'v_mov_b32 {vr(R+4+i)}, {vr(R+i)}')
            for i in range(4): e(f'v_permlane{sw}_swap_b32 {vr(R+i)}, {vr(R+4+i)}')
            for i in range(0, 4, 2): e(f'v_pk_add_f32 {vr(R+i,2)}, {vr(R+i,2)}, {vr(R+4+i,2)}')
        e(f'v_cvt_pk_bf16_f32 {vr(R+8)}, {vr(R)}, {vr(R+1)}')
        e(f'v_cvt_pk_bf16_f32 {vr(R+9)}, {vr(R+2)}, {vr(R+3)}')
        e(f'v_mov_b32_dpp {vr(R+10)}, {vr(R+8)} row_shl:8 row_mask:0xf bank_mask:0xf')
        e(f'v_mov_b32_dpp {vr(R+11)}, {vr(R+9)} row_shl:8 row_mask:0xf bank_mask:0xf')
        self.set_exec('0xff', '0')
        e(f'buffer_store_dwordx4 {vr(R+8,4)}, v3, {S_WS}, {sD} offen sc1')
        self.full_exec()
        e(f's_branch {lend}')
        e.label(lz)
        e(f's_add_u32 {sB}, {sC}, {sW}')
        e(f's_cmp_eq_u32 {sB}, 1')
        e(f's_cbranch_scc0 {lend}')
        e(f's_add_u32 {sA}, {sA}, 16384')
        e(f'v_lshlrev_b32 v14, 8, v1')
        e(f'v_lshl_add_u32 v14, v2, 7, v14')
        lp, ld = e.newlabel('ownzp'), e.newlabel('ownzd')
        e(f's_mov_b32 {sCNT}, 0')
        e.label(lp)
        e(f'buffer_load_dwordx4 {vr(R,4)}, v14, {S_WS}, {sA} offen sc1')
        e.wait_vm0()
        e(f'v_cmp_eq_u32 vcc, -1, {vr(R)}')
        e(f's_cbranch_vccz {ld}')
        e(f's_add_u32 {sCNT}, {sCNT}, 1')
        e(f's_cmp_lt_u32 {sCNT}, {SPIN_MAX}')
        e(f's_cbranch_scc1 {lp}')
        e.label(ld)
        for ror in (8, 4, 2, 1):
            for i in range(4):
                e(f'v_add_f32_dpp {vr(R+i)}, {vr(R+i)}, {vr(R+i)} row_ror:{ror} row_mask:0xf bank_mask:0xf')
        for i in range(4): e(f'v_mov_b32 {vr(R+4+i)}, {vr(R+i)}')
        for i in range(4): e(f'v_permlane16_swap_b32 {vr(R+i)}, {vr(R+4+i)}')
        for i in range(0, 4, 2): e(f'v_pk_add_f32 {vr(R+i,2)}, {vr(R+i,2)}, {vr(R+4+i,2)}')
        e(f'v_cvt_pk_bf16_f32 {vr(R+8)}, {vr(R)}, {vr(R+1)}')
        e(f'v_cvt_pk_bf16_f32 {vr(R+9)}, {vr(R+2)}, {vr(R+3)}')
        e(f'v_mov_b32 {vr(R+10)}, {vr(R+8)}')
        e(f'v_mov_b32 {vr(R+11)}, {vr(R+9)}')
        e(f'v_permlane32_swap_b32 {vr(R+8)}, {vr(R+10)}')
        e(f'v_permlane32_swap_b32 {vr(R+9)}, {vr(R+11)}')
        e('s_mov_b64 exec, 1')
        e(f'buffer_store_dwordx4 {vr(R+8,4)}, v3, {S_WS}, {sD} offen offset:256 sc1')
        self.full_exec()
        e.label(lend)
        e.vm = ['own']

    RING = 8
    RED = 65536
    TRB = 114688
    ACC = 16
    WF = 80
    AR = 128
    def gemm(self, name, nsteps, srdW, pitch, natural, w_is_A, set_bases, hint_blocks, after_hint=None):
        e = self.e
        ACC, WF, AR, RING = self.ACC, self.WF, self.AR, self.RING
        vWsrc, vT0, vT1, vA0, vA1, vH, vCHK, T0, T1 = 4, 5, 6, 7, 8, 9, 10, 14, 15
        set_bases()
        e(f'v_lshrrev_b32 {vr(T0)}, 3, v0')
        e(f'v_mul_u32_u24 {vr(vWsrc)}, {pitch}, {vr(T0)}')
        e(f'v_bfe_u32 {vr(T0)}, v0, 4, 1')
        e(f'v_lshlrev_b32 {vr(T0)}, 2, {vr(T0)}')
        e(f'v_and_b32 {vr(T1)}, 7, v0')
        e(f'v_xor_b32 {vr(T0)}, {vr(T0)}, {vr(T1)}')
        e(f'v_lshl_add_u32 {vr(vWsrc)}, {vr(T0)}, 4, {vr(vWsrc)}')
        e(f's_mul_i32 {sF}, {sW}, {RING*2048}')
        self.tr_addr(vr(vT0), vr(T0), vr(T1), natural)
        e(f's_lshl_b32 {sA}, {sWA}, 6')
        e(f'v_xor_b32 {vr(vT0)}, {sA}, {vr(vT0)}')
        e(f'v_add_u32 {vr(vT0)}, {sF}, {vr(vT0)}')
        e(f'v_xor_b32 {vr(vT1)}, 64, {vr(vT0)}')
        e(f's_lshl_b32 {sA}, {sWB}, 10')
        e(f'v_add_u32 {vr(vA0)}, {sA}, v3')
        e(f'v_xor_b32 {vr(vA1)}, 1024, {vr(vA0)}')
        hint_blocks(vr(vH), vr(T0))
        e(f'v_lshlrev_b32 {vr(vH)}, 10, {vr(vH)}')
        astep = 512 if natural else 1024
        def dma_w(s):
            for h in range(2):
                e(f's_add_u32 m0, {sF}, {(s % RING)*2048 + h*1024}')
                e(f's_add_u32 {sA}, {sE}, {(s*16 + h*8)*pitch}')
                e(f'buffer_load_dwordx4 {vr(vWsrc)}, {srdW}, {sA} offen lds', tag=('w', s))
        def ld_a(s):
            r = AR + (s % RING) * 8
            if s % 2 == 0:
                e(f's_add_u32 {sC}, {sD}, {s*2048}')
            o = (s % 2) * 2048
            e(f'buffer_load_dwordx4 {vr(r,4)}, {vr(vA0)}, {S_WS}, {sC} offen offset:{o} sc1', tag=('a', s))
            e(f'buffer_load_dwordx4 {vr(r+4,4)}, {vr(vA1)}, {S_WS}, {sC} offen offset:{o} sc1', tag=('a', s))
        def trs(s):
            w = WF + (s % 2) * 8
            o = (s % RING) * 2048
            return [f'ds_read_b64_tr_b16 {vr(w + 4*t + 2*a, 2)}, {vr(vT0 + t)} offset:{o + a*astep}' for t in range(2) for a in range(2)]
        lredo = e.newlabel(name + '_redo')
        e(f's_mov_b32 s70, 0')
        e.label(lredo)
        e.vm = []
        for s in range(min(RING, nsteps)): dma_w(s)
        lp, ld = e.newlabel(name + '_h'), e.newlabel(name + '_hd')
        e(f's_mov_b32 {sCNT}, 0')
        e.label(lp)
        e(f'buffer_load_dword {vr(T0)}, {vr(vH)}, {S_WS}, {sD} offen sc1')
        e.wait_vm0()
        e(f'v_cmp_eq_u32 vcc, -1, {vr(T0)}')
        e(f's_cbranch_vccz {ld}')
        e(f's_add_u32 {sCNT}, {sCNT}, 1')
        e(f's_cmp_lt_u32 {sCNT}, {SPIN_MAX}')
        e(f's_cbranch_scc1 {lp}')
        e.label(ld)
        self.stamp(name + '_hint')
        for s in range(min(RING, nsteps)): ld_a(s)
        if after_hint: after_hint()
        for r in trs(0): e(r)
        e(f'v_mov_b32 {vr(vCHK)}, 0')
        for s in range(nsteps):
            a = AR + (s % RING) * 8
            w = WF + (s % 2) * 8
            need = [('a', s)] + ([('w', s + 1)] if s + 1 < nsteps else [])
            e.wait_vm(need, 'lgkmcnt(0)')
            nxt = trs(s + 1) if s + 1 < nsteps else []
            k = 0
            for ta in range(2):
                for tb_ in range(2):
                    acc = ACC + 16 * (2 * ta + tb_)
                    A, B = (w + 4*ta, a + 4*tb_) if w_is_A else (a + 4*tb_, w + 4*ta)
                    e(f'v_mfma_f32_32x32x16_bf16 {vr(acc,16)}, {vr(A,4)}, {vr(B,4)}, {"0" if s == 0 else vr(acc,16)}')
                    if k == 0:
                        for r in nxt: e(r)
                        e(f'v_max3_u32 {vr(vCHK)}, {vr(vCHK)}, {vr(a)}, {vr(a+4)}')
                    if k == 1 and s + RING < nsteps:
                        dma_w(s + RING)
                    if k == 3 and s + RING < nsteps:
                        ld_a(s + RING)
                    k += 1
        lok = e.newlabel(name + '_ok')
        e(f'v_cmp_eq_u32 vcc, -1, {vr(vCHK)}')
        e(f's_cbranch_vccz {lok}')
        e(f's_add_u32 s70, s70, 1')
        e(f's_cmp_lt_u32 s70, 64')
        e(f's_cbranch_scc1 {lredo}')
        e.label(lok)
        self.stamp(name + '_mfma')
        vRW = 4
        for i in range(1, 4):
            e(f's_xor_b32 {sA}, {sW}, {i}')
            e(f's_mul_i32 {sA}, {sA}, {3*4096}')
            e(f's_add_u32 {sA}, {sA}, {self.RED + (i-1)*4096}')
            e(f'v_add_u32 {vr(vRW+i)}, {sA}, v3')
        for i in range(1, 4):
            for q in range(4):
                e(f'ds_write_b128 {vr(vRW+i)}, {vr(ACC + 16*i + 4*q, 4)} offset:{q*1024}')
        e(f's_mul_i32 {sA}, {sW}, {3*4096}')
        e(f's_add_u32 {sA}, {sA}, {self.RED}')
        e(f'v_add_u32 {vr(vRW)}, {sA}, v3')
        e('s_waitcnt lgkmcnt(0)')
        e('s_barrier')
        for i in range(1, 4):
            for q in range(4):
                e(f'ds_read_b128 {vr(ACC + 16*i + 4*q, 4)}, {vr(vRW)} offset:{(i-1)*4096 + q*1024}')
        for i in range(1, 4):
            e(f's_waitcnt lgkmcnt({4*(3-i)})')
            for k in range(8):
                e(f'v_pk_add_f32 {vr(ACC+2*k,2)}, {vr(ACC+2*k,2)}, {vr(ACC+16*i+2*k,2)}')
        self.stamp(name + '_red')

    def p2(self):
        e = self.e
        XRES = 96
        e(f's_lshl_b32 {sA}, {sTB}, 16')
        e(f's_lshl_b32 {sB}, {sWB}, 15')
        e(f's_add_u32 {sA}, {sA}, {sB}')
        e(f's_lshl_b32 {sB}, {sJ}, 7')
        e(f's_add_u32 {sA}, {sA}, {sB}')
        e(f's_lshl_b32 {sB}, {sWA}, 6')
        e(f's_add_u32 {sA}, {sA}, {sB}')
        e(f'v_lshlrev_b32 v14, 10, v1')
        e(f'v_lshl_add_u32 v14, v2, 3, v14')
        for q in range(4):
            e(f'buffer_load_dwordx2 {vr(XRES+2*q,2)}, v14, {S_X}, {sA} offen offset:{q*16}')
        e('s_barrier')
        def bases():
            e(f's_lshl_b32 {sD}, {sTB}, 16')
            e(f's_lshl_b32 {sB}, {sW}, 14')
            e(f's_add_u32 {sD}, {sD}, {sB}')
            e(f's_add_u32 {sD}, {sD}, {WS_O}')
            e(f's_lshl_b32 {sE}, {sW}, 17')
            e(f's_lshl_b32 {sB}, {sJ}, 7')
            e(f's_add_u32 {sE}, {sE}, {sB}')
        def hint(v, t):
            e(f'v_and_b32 {v}, 7, v0')
            e(f'v_lshrrev_b32 {t}, 1, {v}')
            e(f'v_lshlrev_b32 {t}, 2, {t}')
            e(f'v_and_b32 {v}, 1, {v}')
            e(f'v_add3_u32 {v}, {v}, {t}, 2')
        self.gemm('p2', 8, S_WO, 1024, False, True, bases, hint)
        ACC = self.ACC
        HB = 32
        for i in range(8):
            e(f'v_lshlrev_b32 {vr(48+2*i)}, 16, {vr(XRES+i)}')
            e(f'v_and_b32 {vr(48+2*i+1)}, 0xffff0000, {vr(XRES+i)}')
        for i in range(8):
            e(f'v_pk_add_f32 {vr(ACC+2*i,2)}, {vr(ACC+2*i,2)}, {vr(48+2*i,2)}')
        for i in range(8):
            e(f'v_cvt_pk_bf16_f32 {vr(HB+i)}, {vr(ACC+2*i)}, {vr(ACC+2*i+1)}')
        e('v_mov_b32 v40, 0')
        e('v_mov_b32 v41, 0')
        for i in range(8):
            e(f'v_dot2c_f32_bf16 v40, {sONES}, {vr(HB+i)}')
            e(f'v_dot2c_f32_bf16 v41, {vr(HB+i)}, {vr(HB+i)}')
        self.stat_store_soff(sD)
        e('v_mov_b32 v42, v40')
        e('v_mov_b32 v43, v41')
        e('v_permlane32_swap_b32 v40, v42')
        e('v_permlane32_swap_b32 v41, v43')
        e('v_pk_add_f32 v[40:41], v[40:41], v[42:43]')
        e('v_lshlrev_b32 v14, 3, v1')
        self.set_exec('-1', '0')
        e(f'buffer_store_dwordx2 v[40:41], v14, {S_WS}, {sD} offen sc1')
        self.full_exec()
        e(f's_lshl_b32 {sA}, {sTB}, 3')
        e(f's_add_u32 {sA}, {sA}, {sJ}')
        e(f's_lshl_b32 {sA}, {sA}, 2')
        e(f's_add_u32 {sA}, {sA}, {sW}')
        e(f's_lshl_b32 {sA}, {sA}, 11')
        e(f's_add_u32 {sA}, {sA}, {WS_H}')
        e(f'buffer_store_dwordx4 {vr(HB,4)}, v3, {S_WS}, {sA} offen sc1')
        e(f'buffer_store_dwordx4 {vr(HB+4,4)}, v3, {S_WS}, {sA} offen offset:1024 sc1')
        self.stamp('stat_pub')
        for i in range(8):
            e(f'v_lshlrev_b32 {vr(ACC+2*i)}, 16, {vr(HB+i)}')
            e(f'v_and_b32 {vr(ACC+2*i+1)}, 0xffff0000, {vr(HB+i)}')
        e(f's_lshl_b32 {sD}, {sTB}, 1')
        e(f's_add_u32 {sD}, {sD}, {sWB}')
        e(f's_lshl_b32 {sD}, {sD}, 12')
        e(f's_add_u32 {sD}, {sD}, {WS_STAT}')
        e('v_lshl_add_u32 v14, v2, 11, v14')
        vW0, vW1, vR0, vR1 = 4, 5, 6, 7
        self.pk_write_addr(vr(vW0), vr(vW1), 'v15')
        self.pk_read_addr(vr(vR0), vr(vR1), 'v15', 'v8')
        e(f's_lshl_b32 {sA}, {sW}, 11')
        e(f's_add_u32 {sA}, {sA}, {self.TRB}')
        for r in (vW0, vW1, vR0, vR1):
            e(f'v_add_u32 {vr(r)}, {sA}, {vr(r)}')
        self.hn_store_soff(sE)
        ST = 48
        lp, ld = e.newlabel('st'), e.newlabel('std')
        e(f's_mov_b32 {sCNT}, 0')
        e.label(lp)
        for i in range(8):
            e(f'buffer_load_dwordx2 {vr(ST+2*i,2)}, v14, {S_WS}, {sD} offen offset:{i*256} sc1')
        e.wait_vm0()
        e(f'v_max3_u32 v8, {vr(ST+1)}, {vr(ST+3)}, {vr(ST+5)}')
        e(f'v_max3_u32 v9, {vr(ST+7)}, {vr(ST+9)}, {vr(ST+11)}')
        e(f'v_max3_u32 v8, v8, {vr(ST+13)}, {vr(ST+15)}')
        e('v_max_u32 v8, v8, v9')
        e('v_cmp_eq_u32 vcc, -1, v8')
        e(f's_cbranch_vccz {ld}')
        e(f's_add_u32 {sCNT}, {sCNT}, 1')
        e(f's_cmp_lt_u32 {sCNT}, {SPIN_MAX}')
        e(f's_cbranch_scc1 {lp}')
        e.label(ld)
        self.stamp('stat_got')
        for step in (8, 4, 2):
            for i in range(0, step, 2):
                e(f'v_pk_add_f32 {vr(ST+i,2)}, {vr(ST+i,2)}, {vr(ST+step+i,2)}')
        e(f'v_mov_b32 {vr(ST+2)}, {vr(ST)}')
        e(f'v_mov_b32 {vr(ST+3)}, {vr(ST+1)}')
        e(f'v_permlane32_swap_b32 {vr(ST)}, {vr(ST+2)}')
        e(f'v_permlane32_swap_b32 {vr(ST+1)}, {vr(ST+3)}')
        e(f'v_pk_add_f32 {vr(ST,2)}, {vr(ST,2)}, {vr(ST+2,2)}')
        e(f's_mov_b32 {sC}, {fbits(1.0/512)}')
        e(f'v_mul_f32 v8, {fbits(-1.0/512)}, {vr(ST)}')
        e('v_mul_f32 v9, v8, v8')
        e(f'v_fma_f32 v9, {vr(ST+1)}, {sC}, -v9')
        e('v_max_f32 v9, 0, v9')
        e(f'v_add_f32 v10, {fbits(1e-5)}, v9')
        e('v_rsq_f32 v10, v10')
        e('v_mul_f32 v11, v10, v10')
        e(f's_mov_b32 {sC}, {fbits(1e-5)}')
        e(f'v_fma_f32 v11, v11, v9, {sC}')
        e('v_rsq_f32 v11, v11')
        e('v_mul_f32 v10, v10, v11')
        e('v_mul_f32 v8, v8, v10')
        for i in range(8):
            e(f'v_pk_fma_f32 {vr(ACC+2*i,2)}, {vr(ACC+2*i,2)}, v[10:11], v[8:9] op_sel_hi:[1,0,0]')
        for i in range(8):
            e(f'v_cvt_pk_bf16_f32 {vr(HB+i)}, {vr(ACC+2*i)}, {vr(ACC+2*i+1)}')
        e(f'ds_write_b128 {vr(vW0)}, {vr(HB,4)}')
        e(f'ds_write_b128 {vr(vW1)}, {vr(HB+4,4)}')
        e('s_waitcnt lgkmcnt(0)')
        for u in range(2):
            e(f'ds_read_b64_tr_b16 {vr(48+4*u,2)}, {vr(vR0)} offset:{u*1024}')
            e(f'ds_read_b64_tr_b16 {vr(48+4*u+2,2)}, {vr(vR1)} offset:{u*1024}')
        for u in range(2):
            e(f's_waitcnt lgkmcnt({2-2*u})')
            e(f'buffer_store_dwordx4 {vr(48+4*u,4)}, v3, {S_WS}, {sE} offen offset:{u*2048} sc1')
        self.stamp('hn_pub')

    def g1(self):
        e = self.e
        lskip = e.newlabel('g1skip')
        e(f's_cmp_eq_u32 {sG1}, 0')
        e(f's_cbranch_scc1 {lskip}')
        BR = 96
        e(f's_lshl_b32 {sA}, {sFB}, 7')
        e(f's_lshl_b32 {sB}, {sWA}, 6')
        e(f's_add_u32 {sA}, {sA}, {sB}')
        e('v_lshlrev_b32 v14, 3, v2')
        for q in range(4):
            e(f'buffer_load_dwordx2 {vr(BR+2*q,2)}, v14, {S_B1}, {sA} offen offset:{q*16}')
        e('s_barrier')
        def bases():
            e(f's_lshl_b32 {sD}, {sDB}, 18')
            e(f's_lshl_b32 {sB}, {sW}, 16')
            e(f's_add_u32 {sD}, {sD}, {sB}')
            e(f's_add_u32 {sD}, {sD}, {WS_HN}')
            e(f's_mul_i32 {sE}, {sW}, {512*3584}')
            e(f's_lshl_b32 {sB}, {sFB}, 7')
            e(f's_add_u32 {sE}, {sE}, {sB}')
        def hint(v, t):
            e(f'v_lshrrev_b32 {t}, 1, v1')
            e(f'v_lshlrev_b32 {t}, 2, {t}')
            e(f'v_and_b32 {v}, 1, v1')
            e(f'v_add3_u32 {v}, {v}, {t}, 2')
        self.gemm('g1', 32, S_W1, 3584, True, True, bases, hint)
        ACC = self.ACC
        for i in range(8):
            e(f'v_lshlrev_b32 {vr(48+2*i)}, 16, {vr(BR+i)}')
            e(f'v_and_b32 {vr(48+2*i+1)}, 0xffff0000, {vr(BR+i)}')
        k1 = -2.0 * 0.7978845608028654 * LOG2E
        k2 = k1 * 0.044715
        e(f's_mov_b32 s72, {fbits(k1)}')
        e(f's_mov_b32 s73, {fbits(k1)}')
        e(f'v_mov_b32 v8, {fbits(k2)}')
        e('v_mov_b32 v10, 1.0')
        self.g_store_soff(sE)
        U, Z = ACC, 32
        for i in range(8):
            e(f'v_pk_add_f32 {vr(U+2*i,2)}, {vr(U+2*i,2)}, {vr(48+2*i,2)}')
        for i in range(8):
            e(f'v_pk_mul_f32 {vr(Z+2*i,2)}, {vr(U+2*i,2)}, {vr(U+2*i,2)}')
        for i in range(8):
            e(f'v_pk_fma_f32 {vr(Z+2*i,2)}, {vr(Z+2*i,2)}, v[8:9], s[72:73] op_sel_hi:[1,0,1]')
        for i in range(8):
            e(f'v_pk_mul_f32 {vr(Z+2*i,2)}, {vr(Z+2*i,2)}, {vr(U+2*i,2)}')
        for u in range(2):
            for i in range(8): e(f'v_exp_f32 {vr(Z+8*u+i)}, {vr(Z+8*u+i)}')
            for i in range(4): e(f'v_pk_add_f32 {vr(Z+8*u+2*i,2)}, {vr(Z+8*u+2*i,2)}, v[10:11] op_sel_hi:[1,0]')
            for i in range(8): e(f'v_rcp_f32 {vr(Z+8*u+i)}, {vr(Z+8*u+i)}')
            for i in range(4): e(f'v_pk_mul_f32 {vr(Z+8*u+2*i,2)}, {vr(Z+8*u+2*i,2)}, {vr(U+8*u+2*i,2)}')
            for i in range(4): e(f'v_cvt_pk_bf16_f32 {vr(48+4*u+i)}, {vr(Z+8*u+2*i)}, {vr(Z+8*u+2*i+1)}')
            e(f'buffer_store_dwordx4 {vr(48+4*u,4)}, v3, {S_WS}, {sE} offen offset:{u*2048} sc1')
        e.label(lskip)
        self.stamp('g_pub')

    def g2(self):
        e = self.e
        HR = 96; vB2 = 104
        e(f's_lshl_b32 {sA}, {sSB}, 7')
        e(f's_lshl_b32 {sB}, {sWA}, 6')
        e(f's_add_u32 {sA}, {sA}, {sB}')
        e('v_lshlrev_b32 v14, 1, v1')
        e(f'buffer_load_ushort {vr(vB2)}, v14, {S_B2}, {sA} offen')
        e('s_barrier')
        def bases():
            e(f's_mul_i32 {sD}, {sDB}, {112*2048}')
            e(f's_mul_i32 {sB}, {sW}, {28*2048}')
            e(f's_add_u32 {sD}, {sD}, {sB}')
            e(f's_add_u32 {sD}, {sD}, {WS_G}')
            e(f's_mul_i32 {sE}, {sW}, {448*4096}')
            e(f's_lshl_b32 {sB}, {sSB}, 7')
            e(f's_add_u32 {sE}, {sE}, {sB}')
        def hint(v, t):
            e(f'v_min_u32 {v}, 27, v1')
            e(f'v_lshrrev_b32 {t}, 1, {v}')
            e(f'v_lshlrev_b32 {t}, 2, {t}')
            e(f'v_and_b32 {v}, 1, {v}')
            e(f'v_add3_u32 {v}, {v}, {t}, 2')
        def hload():
            e(f's_lshl_b32 {sA}, {sSB}, 3')
            e(f's_add_u32 {sA}, {sA}, {sDB}')
            e(f's_lshl_b32 {sA}, {sA}, 1')
            e(f's_add_u32 {sA}, {sA}, {sWB}')
            e(f's_lshl_b32 {sA}, {sA}, 1')
            e(f's_add_u32 {sA}, {sA}, {sWA}')
            e(f's_lshl_b32 {sA}, {sA}, 11')
            e(f's_add_u32 {sA}, {sA}, {WS_H}')
            e(f'buffer_load_dwordx4 {vr(HR,4)}, v3, {S_WS}, {sA} offen sc1', tag='h')
            e(f'buffer_load_dwordx4 {vr(HR+4,4)}, v3, {S_WS}, {sA} offen offset:1024 sc1', tag='h')
        self.gemm('g2', 28, S_W2, 4096, False, False, bases, hint, hload)
        ACC = self.ACC
        e(f's_lshl_b32 {sA}, {sSB}, 16')
        e(f's_lshl_b32 {sB}, {sWA}, 15')
        e(f's_add_u32 {sA}, {sA}, {sB}')
        e(f's_lshl_b32 {sB}, {sDB}, 7')
        e(f's_add_u32 {sA}, {sA}, {sB}')
        e(f's_lshl_b32 {sB}, {sWB}, 6')
        e(f's_add_u32 {sA}, {sA}, {sB}')
        e('v_lshlrev_b32 v14, 10, v1')
        e('v_lshl_add_u32 v14, v2, 4, v14')
        e.wait_vm0()
        e(f'v_lshlrev_b32 v8, 16, {vr(vB2)}')
        for i in range(8):
            e(f'v_lshlrev_b32 {vr(48+2*i)}, 16, {vr(HR+i)}')
            e(f'v_and_b32 {vr(48+2*i+1)}, 0xffff0000, {vr(HR+i)}')
        for i in range(8):
            e(f'v_pk_add_f32 {vr(ACC+2*i,2)}, {vr(ACC+2*i,2)}, v[8:9] op_sel_hi:[1,0]')
        for i in range(8):
            e(f'v_pk_add_f32 {vr(ACC+2*i,2)}, {vr(ACC+2*i,2)}, {vr(48+2*i,2)}')
        for i in range(8):
            e(f'v_cvt_pk_bf16_f32 {vr(32+i)}, {vr(ACC+2*i)}, {vr(ACC+2*i+1)}')
        for p in range(2):
            e(f'v_permlane32_swap_b32 {vr(32+4*p)}, {vr(32+4*p+2)}')
            e(f'v_permlane32_swap_b32 {vr(32+4*p+1)}, {vr(32+4*p+3)}')
        for p in range(2):
            e(f'buffer_store_dwordx4 {vr(32+4*p,4)}, v14, {S_OUT}, {sA} offen offset:{p*32}')
        self.stamp('out')

    def epilogue(self):
        e = self.e
        if self.stamps:
            e('s_waitcnt vmcnt(0)')
            self.stamp('drain')
            e(f's_lshl_b32 {sA}, s2, 2')
            e(f's_add_u32 {sA}, {sA}, {sW}')
            e(f's_lshl_b32 {sA}, {sA}, 7')
            e(f's_add_u32 {sA}, {sA}, {WS_STAMP}')
            e('v_mov_b32 v4, 0')
            for i in range(self.nstamp):
                e(f'v_mov_b32 v5, s{STAMP0+i}')
                e('s_mov_b64 exec, 1')
                e(f'buffer_store_dword v5, v4, {S_WS}, {sA} offen offset:{4*i}')
                e('s_mov_b64 exec, -1')
        e.label('L_end')
        e('s_endpgm')

    def build(self):
        self.prologue()
        self.p1()
        if self.stop_after != 'p1':
            self.p2()
            if self.stop_after != 'p2':
                self.g1()
                if self.stop_after != 'g1':
                    self.g2()
        self.epilogue()
        assert STAMP0 + self.nstamp <= 100
        hdr = f'''; Fused persistent kernel: LN -> QKV -> hedgehog linear attention -> Wo -> LN,LN -> token-mixing MLP
; @launch grid=(256,1,1) block=(256,1,1) lds=163840
.amdgcn_target "amdgcn-amd-amdhsa--gfx950"
.text
.globl {KNAME}
.p2align 8
.type {KNAME},@function
{KNAME}:
'''
        tail = f'''.section .rodata,"a"
.p2align 6
.amdhsa_kernel {KNAME}
  .amdhsa_next_free_vgpr 512
  .amdhsa_next_free_sgpr 102
  .amdhsa_accum_offset 256
  .amdhsa_group_segment_fixed_size 0
  .amdhsa_kernarg_size 96
  .amdhsa_user_sgpr_count 2
  .amdhsa_user_sgpr_kernarg_segment_ptr 1
  .amdhsa_system_sgpr_workgroup_id_x 1
  .amdhsa_float_denorm_mode_32 3
.end_amdhsa_kernel
'''
        return hdr + self.e.text() + tail


if __name__ == '__main__':
    import argparse
    ap = argparse.ArgumentParser()
    ap.add_argument('-o', default='k.s')
    ap.add_argument('--stamps', action='store_true')
    ap.add_argument('--stop', default=None)
    a = ap.parse_args()
    g = Gen(stamps=a.stamps, stop_after=a.stop)
    s = g.build()
    open(a.o, 'w').write(s)
    if a.stamps:
        open(a.o + '.stamps', 'w').write('\n'.join(g.stamp_names))
    print('wrote', a.o, 'lines', s.count('\n'), 'nops inserted', g.e.nops)
```

```python
import sys, os
sys.path.insert(0, os.path.dirname(os.path.abspath(__file__)))
from emit import Emitter

KNAME = "sequential_preLN__linear_kernel_hedgehog__mixer_token_mlp__prompt_kernel"

WS_EPOCH = 0
WS_FLAG = 4096
WS_FIN = 0x10000
WS_STAT = 0x40000
WS_PART = 0x100000
WS_O = 0x400000
WS_H = 0x600000
WS_HN = 0x800000
WS_G = 0xA00000
WS_STAMP = 0xC00000
WS_DUMP = 0xD00000
WS_SIZE = 0x1000000

S_X, S_WQKV, S_WS, S_WO, S_W1, S_W2, S_OUT, S_WPHI, S_B1, S_B2 = [f's[{i}:{i+3}]' for i in range(8, 48, 4)]
sW, sTB, sJ, sTAG = 's48', 's49', 's50', 's53'
sDB, sFB, sSB, sG1 = 's54', 's55', 's56', 's57'
sWA, sWB = 's58', 's59'
sT, sHP = sWA, sWB
WO_B = ('s0', 's1', 's3'); W1_B = ('s4', 's5', 's6'); W2_B = ('s7', 's51', 's52')
sOst, sFINo, sSTst, sHNst, sGst, sSTG, sAb0, sAb1 = 's72', 's73', 's74', 's75', 's76', 's77', 's78', 's79'
sCNT = 's60'
sA, sB, sC, sD, sE, sF = 's61', 's62', 's63', 's64', 's65', 's66'
sONES = 's67'
sM = 's[68:69]'
STAMP0 = 80

LOG2E = 1.4426950408889634
import struct
def fbits(x):
    return '0x%08x' % struct.unpack('<I', struct.pack('<f', x))[0]

def vr(a, n=1):
    return f'v{a}' if n == 1 else f'v[{a}:{a+n-1}]'

SPIN_MAX = 0x20000


class Gen:
    def __init__(self, stamps=False, stop_after=None, opts=None):
        self.opts = opts or {}
        self.cold_code = []
        self.e = Emitter()
        self.stamps = stamps
        self.nstamp = 0
        self.stamp_names = []
        self.stop_after = stop_after

    def stamp(self, name):
        if not self.stamps:
            return
        sel = self.opts.get('sel')
        if sel is not None:
            if not any(name.startswith(p) for p in sel.split('+')): return
        elif name.startswith('x_'):
            return
        e = self.e
        i = self.nstamp
        self.nstamp += 1
        self.stamp_names.append(name)
        e(f's_memrealtime s[100:101]')
        e('s_waitcnt lgkmcnt(0)')
        e(f's_mov_b32 s{STAMP0+i}, s100')

    def prologue(self):
        e = self.e
        if self.stamps:
            e('s_memrealtime s[96:97]')
            e('s_memtime s[4:5]')
            e('s_waitcnt lgkmcnt(0)')
            e('s_mov_b32 s71, s4')
        e('s_cmp_ge_u32 s2, 256')
        e('s_cbranch_scc1 L_end')
        e('s_load_dwordx16 s[72:87], s[0:1], 0')
        e('s_load_dwordx8 s[88:95], s[0:1], 64')
        e('v_readfirstlane_b32 s48, v0')
        e('v_and_b32 v0, 63, v0')
        e(f's_lshr_b32 {sW}, {sW}, 6')
        e('s_and_b32 s4, s2, 7')
        e('s_lshr_b32 s5, s2, 3')
        e(f's_lshr_b32 {sTB}, s5, 3')
        e(f's_lshl_b32 s6, s4, 2')
        e(f's_add_u32 {sTB}, {sTB}, s6')
        e(f's_and_b32 {sJ}, s5, 7')
        e(f's_lshr_b32 {sWA}, {sW}, 1')
        e(f's_and_b32 {sWB}, {sW}, 1')
        e('v_and_b32 v1, 31, v0')
        e('v_lshrrev_b32 v2, 5, v0')
        e('v_lshlrev_b32 v3, 4, v0')

    def srd(self, dst, lo, size):
        e = self.e
        d = int(dst[2:].split(':')[0])
        e(f's_mov_b32 s{d}, s{lo}')
        e(f's_mov_b32 s{d+1}, s{lo+1}')
        e(f's_mov_b32 s{d+2}, {size}')
        e(f's_mov_b32 s{d+3}, 0x20000')

    def prologue2(self):
        e = self.e
        self.srd(S_WS, 94, WS_SIZE)
        e('s_load_dword s53, s[94:95], 0')
        self.srd(S_WO, 78, 512 * 512 * 2)
        self.srd(S_W1, 82, 2048 * 1792 * 2)
        self.srd(S_B1, 84, 1792 * 2)
        self.srd(S_W2, 86, 1792 * 2048 * 2)
        self.srd(S_B2, 88, 2048 * 2)
        self.srd(S_OUT, 90, 2048 * 512 * 2)
        e(f's_mov_b32 {sONES}, 0x3f803f80')
        if self.stamps:
            e(f's_mov_b32 s{STAMP0}, s96')
            self.nstamp = 1
            self.stamp_names.append('start')
        e(f's_and_b32 {sA}, s2, 7')
        e(f's_lshr_b32 {sC}, s2, 3')
        e(f's_and_b32 {sB}, {sA}, 1')
        e(f's_lshl_b32 {sB}, {sB}, 2')
        e(f's_and_b32 s70, {sC}, 3')
        e(f's_add_u32 {sDB}, {sB}, s70')
        e(f's_lshr_b32 {sA}, {sA}, 1')
        e(f's_lshr_b32 {sC}, {sC}, 2')
        e(f's_mul_i32 {sFB}, {sA}, 7')
        e(f's_add_u32 {sFB}, {sFB}, {sC}')
        e(f's_lshl_b32 {sSB}, {sA}, 3')
        e(f's_add_u32 {sSB}, {sSB}, {sC}')
        e(f's_cmp_lt_u32 {sC}, 7')
        e(f's_cselect_b32 {sG1}, 1, 0')
        e('s_lshl_b32 s70, s70, 1')
        e(f's_add_u32 s70, s70, {sC}')
        e(f's_and_b32 {sA}, s70, 7')
        e(f's_lshl_b32 {sA}, {sA}, 2')
        if self.opts.get('norot'): e(f's_mov_b32 {sA}, 0')
        e(f's_sub_u32 {W1_B[2]}, 32, {sA}')
        e(f's_lshl_b32 {sB}, {sW}, 5')
        e(f's_add_u32 {sA}, {sA}, {sB}')
        e(f's_mul_i32 {W1_B[0]}, {sA}, {16*3584}')
        e(f's_lshl_b32 {sB}, {sFB}, 7')
        e(f's_add_u32 {W1_B[0]}, {W1_B[0]}, {sB}')
        e(f's_sub_u32 {W1_B[1]}, {W1_B[0]}, {32*16*3584}')
        e(f's_cmp_eq_u32 {sG1}, 1')
        e(f's_cselect_b32 {W1_B[0]}, {W1_B[0]}, 0x70000000')
        e(f's_cselect_b32 {W1_B[1]}, {W1_B[1]}, 0x70000000')
        e(f's_sub_u32 {sA}, s70, 7')
        e(f's_cmp_ge_u32 s70, 7')
        e(f's_cselect_b32 {sA}, {sA}, s70')
        e(f's_lshl_b32 {sA}, {sA}, 2')
        if self.opts.get('norot'): e(f's_mov_b32 {sA}, 0')
        e(f's_sub_u32 {W2_B[2]}, 28, {sA}')
        e(f's_mul_i32 {sB}, {sW}, 28')
        e(f's_add_u32 {sA}, {sA}, {sB}')
        e(f's_lshl_b32 {W2_B[0]}, {sA}, 16')
        e(f's_lshl_b32 {sB}, {sSB}, 7')
        e(f's_add_u32 {W2_B[0]}, {W2_B[0]}, {sB}')
        e(f's_sub_u32 {W2_B[1]}, {W2_B[0]}, {28*16*4096}')
        e(f's_sub_u32 {sA}, 8, {WO_B[2]}')
        e(f's_lshl_b32 {sB}, {sW}, 3')
        e(f's_add_u32 {sA}, {sA}, {sB}')
        e(f's_lshl_b32 {WO_B[0]}, {sA}, 14')
        e(f's_lshl_b32 {sB}, {sJ}, 7')
        e(f's_add_u32 {WO_B[0]}, {WO_B[0]}, {sB}')
        e(f's_sub_u32 {WO_B[1]}, {WO_B[0]}, {8*16*1024}')
        e(f's_lshl_b32 {sSTG}, {sW}, 14')
        e(f's_add_u32 {sSTG}, {sSTG}, {self.STG}')
        self.o_store_soff(sOst)
        self.fin_owner_soff(sFINo)
        self.stat_store_soff(sSTst)
        self.hn_store_soff(sHNst)
        self.g_store_soff(sGst)

    def part_store_addr(self, v, tmp):
        e = self.e
        e(f's_lshl_b32 {sA}, {sJ}, 2')
        e(f's_add_u32 {sA}, {sA}, {sW}')
        e(f's_mul_i32 {sA}, {sA}, {12*8192}')
        e(f's_lshl_b32 {sB}, {sTB}, 8')
        e(f's_add_u32 {sA}, {sA}, {sB}')
        e(f's_add_u32 {sA}, {sA}, {WS_PART}')
        e(f'v_mul_u32_u24 {v}, 3, v2')
        e(f'v_lshrrev_b32 {tmp}, 3, v1')
        e(f'v_add_u32 {v}, {v}, {tmp}')
        e(f'v_lshlrev_b32 {v}, 13, {v}')
        e(f'v_and_b32 {tmp}, 7, v1')
        e(f'v_lshl_add_u32 {v}, {tmp}, 4, {v}')
        e(f'v_add_u32 {v}, {sA}, {v}')

    def o_store_soff(self, s):
        e = self.e
        e(f's_lshl_b32 {s}, {sTB}, 5')
        e(f's_lshl_b32 {sB}, {sJ}, 2')
        e(f's_add_u32 {s}, {s}, {sB}')
        e(f's_lshl_b32 {sB}, {sHP}, 1')
        e(f's_add_u32 {s}, {s}, {sB}')
        e(f's_lshl_b32 {s}, {s}, 1')
        e(f's_add_u32 {s}, {s}, {sT}')
        e(f's_lshl_b32 {s}, {s}, 10')
        e(f's_add_u32 {s}, {s}, {WS_O}')

    def fin_owner_soff(self, s):
        e = self.e
        e(f's_lshl_b32 {s}, {sJ}, 4')
        e(f's_lshr_b32 {sB}, {sTB}, 1')
        e(f's_add_u32 {s}, {s}, {sB}')
        e(f's_lshl_b32 {s}, {s}, 9')
        e(f's_add_u32 {s}, {s}, {WS_FIN}')

    def stat_store_soff(self, s):
        e = self.e
        e(f's_lshl_b32 {s}, {sTB}, 1')
        e(f's_add_u32 {s}, {s}, {sWB}')
        e(f's_lshl_b32 {s}, {s}, 4')
        e(f's_lshl_b32 {sB}, {sJ}, 1')
        e(f's_add_u32 {s}, {s}, {sB}')
        e(f's_add_u32 {s}, {s}, {sWA}')
        e(f's_lshl_b32 {s}, {s}, 8')
        e(f's_add_u32 {s}, {s}, {WS_STAT}')

    def hn_store_soff(self, s):
        e = self.e
        e(f's_lshl_b32 {s}, {sJ}, 7')
        e(f's_lshl_b32 {sB}, {sTB}, 2')
        e(f's_add_u32 {s}, {s}, {sB}')
        e(f's_lshl_b32 {sB}, {sWB}, 1')
        e(f's_add_u32 {s}, {s}, {sB}')
        e(f's_lshl_b32 {s}, {s}, 1')
        e(f's_add_u32 {s}, {s}, {sWA}')
        e(f's_lshl_b32 {s}, {s}, 10')
        e(f's_add_u32 {s}, {s}, {WS_HN}')

    def g_store_soff(self, s):
        e = self.e
        e(f's_mul_i32 {s}, {sDB}, 112')
        e(f's_lshl_b32 {sB}, {sFB}, 2')
        e(f's_add_u32 {s}, {s}, {sB}')
        e(f's_lshl_b32 {sB}, {sWA}, 1')
        e(f's_add_u32 {s}, {s}, {sB}')
        e(f's_lshl_b32 {s}, {s}, 1')
        e(f's_add_u32 {s}, {s}, {sWB}')
        e(f's_lshl_b32 {s}, {s}, 10')
        e(f's_add_u32 {s}, {s}, {WS_G}')

    EXEC_PART = ('0x0001ffff', '0x0001ffff')
    def set_exec(self, lo, hi):
        self.e(f's_mov_b32 exec_lo, {lo}')
        self.e(f's_mov_b32 exec_hi, {hi}')
    def full_exec(self):
        self.e('s_mov_b64 exec, -1')

    XR, KR, VR = 0, 32768, 65536
    STG = 98304
    MISC = 0
    PKB = 8192
    VVB = 24576
    RED = 0
    TRB = 49152
    STG2 = 57344
    vSRCO, vSRC1, vSRC2 = 120, 192, 193
    vTRP, vTRN, vTRP2 = 194, 196, 198

    def w_src_off(self, v, pitch, t0, t1):
        e = self.e
        e(f'v_lshrrev_b32 {t0}, 3, v0')
        e(f'v_mul_u32_u24 {v}, {pitch}, {t0}')
        e(f'v_bfe_u32 {t0}, v0, 4, 1')
        e(f'v_lshlrev_b32 {t0}, 2, {t0}')
        e(f'v_and_b32 {t1}, 7, v0')
        e(f'v_xor_b32 {t0}, {t0}, {t1}')
        e(f'v_lshl_add_u32 {v}, {t0}, 4, {v}')

    STREAMS = {'wo': (S_WO, 1024, WO_B), 'w1': (S_W1, 3584, W1_B), 'w2': (S_W2, 4096, W2_B)}
    def bg_dma(self, stream, s, ring, slot):
        srd, pitch, B = self.STREAMS[stream]
        v = {'wo': self.vSRCO, 'w1': self.vSRC1, 'w2': self.vSRC2}[stream]
        base, off = (sSTG, slot * 2048) if ring == 1 else ('s70', slot * 2048)
        g0 = [f's_cmp_le_u32 {B[2]}, {s}', f's_cselect_b32 {sA}, {B[1]}, {B[0]}', f's_add_u32 {sA}, {sA}, {s*16*pitch}',
              f's_add_u32 m0, {base}, {off}', (f'buffer_load_dwordx4 {vr(v)}, {srd}, {sA} offen lds', (stream, s))]
        g1 = [f's_add_u32 m0, {base}, {off + 1024}', f's_add_u32 {sA}, {sA}, {8*pitch}',
              (f'buffer_load_dwordx4 {vr(v)}, {srd}, {sA} offen lds', (stream, s))]
        return [g0, g1]
    def emit_group(self, g):
        for x in g:
            if isinstance(x, tuple): self.e(x[0], tag=x[1])
            else: self.e(x)
    def tr_list(self, stream, ring, slot, dst):
        nat = stream == 'w1'
        va = self.vTRN if nat else (self.vTRP if ring == 1 else self.vTRP2)
        astep = 512 if nat else 1024
        k, n = dst
        return [f'ds_read_b64_tr_b16 {k}[{n+4*t+2*a}:{n+4*t+2*a+1}], {vr(va+t)} offset:{slot*2048 + a*astep}' for t in range(2) for a in range(2)]
    def bg_block(self, tr, dma, name=''):
        e = self.e
        if tr:
            e.wait_vm([(t[0], t[1]) for t in tr])
            for (st, s, ring, slot, a) in tr:
                for r in self.tr_list(st, ring, slot, ('a', a)): e(r)
            e('s_waitcnt lgkmcnt(0)')
        for d in dma:
            for g in self.bg_dma(*d): self.emit_group(g)
    def bg_setup(self):
        e = self.e
        self.w_src_off(vr(self.vSRC1), 3584, 'v14', 'v15')
        self.w_src_off(vr(self.vSRC2), 4096, 'v14', 'v15')
        e(f's_lshl_b32 {sA}, {sWA}, 6')
        e(f's_mul_i32 s70, {sW}, 10240')
        e(f's_add_u32 s70, s70, {self.STG2}')
        for (v, nat) in ((self.vTRP, False), (self.vTRN, True)):
            self.tr_addr(vr(v), 'v14', 'v15', nat)
            e(f'v_xor_b32 {vr(v)}, {sA}, {vr(v)}')
            if not nat:
                e(f'v_add_u32 {vr(self.vTRP2)}, s70, {vr(v)}')
                e(f'v_xor_b32 {vr(self.vTRP2+1)}, 64, {vr(self.vTRP2)}')
            e(f'v_add_u32 {vr(v)}, {sSTG}, {vr(v)}')
            e(f'v_xor_b32 {vr(v+1)}, 64, {vr(v)}')

    def p1(self):
        e = self.e
        vWP = 4; vCK, vCV, vXS, vXQ = 8, 9, 10, 11
        vWoff = 13; T0, T1 = 14, 15
        aK, aV = 16, 32
        vXa = 48; vKa = 52; vVa = 56; vXo0, vXo1 = 60, 61; vPART = 62
        WB = [64, 96]; XF = 128
        thr = WO_B[2]
        e(f'v_lshrrev_b32 {vr(T0)}, 3, v0')
        e(f'v_and_b32 {vr(T1)}, 7, v0')
        e(f's_lshl_b32 {sA}, {sW}, 4')
        e(f'v_add_u32 v63, {sA}, {vr(T0)}')
        e(f'v_lshrrev_b32 {vr(T0)}, 1, {vr(T0)}')
        e(f'v_xor_b32 {vr(vXo0)}, {vr(T1)}, {vr(T0)}')
        e(f'v_lshlrev_b32 {vr(vXo0)}, 4, {vr(vXo0)}')
        e(f'v_lshl_add_u32 {vr(vXo0)}, v63, 10, {vr(vXo0)}')
        e(f'v_xor_b32 {vr(vXo1)}, 64, {vr(vXo0)}')
        e(f'v_add_u32 {vr(vXo1)}, 8192, {vr(vXo1)}')
        e(f'v_and_b32 {vr(T0)}, 1, {vr(T0)}')
        e(f'v_lshlrev_b32 {vr(T0)}, 2, {vr(T0)}')
        e(f'v_xor_b32 {vr(T0)}, {vr(T1)}, {vr(T0)}')
        e(f'v_lshlrev_b32 {vr(T0)}, 4, {vr(T0)}')
        e(f'v_mul_u32_u24 {vr(vWoff)}, 3072, v63')
        e(f'v_add_u32 {vr(vWoff)}, {vr(vWoff)}, {vr(T0)}')
        e(f's_and_b32 {sA}, {sTB}, 3')
        e(f's_lshl_b32 {sA}, {sA}, 1')
        e(f's_add_u32 {sA}, {sA}, {sJ}')
        e(f's_and_b32 {sA}, {sA}, 7')
        if self.opts.get('norot'): e(f's_mov_b32 {sA}, 0')
        e(f's_sub_u32 {thr}, 8, {sA}')
        e(f's_lshl_b32 {sD}, {sTB}, 16')
        e(f's_lshl_b32 {sB}, {sA}, 7')
        e(f's_add_u32 {sD}, {sD}, {sB}')
        e(f's_mul_i32 {sE}, {sA}, {64*3072}')
        e(f's_lshl_b32 {sB}, {sJ}, 7')
        e(f's_add_u32 {sE}, {sE}, {sB}')
        e(f's_lshl_b32 {sF}, {sW}, 11')
        e('s_waitcnt lgkmcnt(0)')
        self.srd(S_X, 72, 2048 * 512 * 2)
        self.srd(S_WQKV, 74, 512 * 1536 * 2)
        Xb1, Wb1 = 's68', 's69'
        e(f's_sub_u32 {Xb1}, {sD}, 1024')
        e(f's_sub_u32 {Wb1}, {sE}, {512*3072}')
        def g_x(c):
            slot = c % 4
            return [[f's_cmp_le_u32 {thr}, {c}', f's_cselect_b32 {sA}, {Xb1}, {sD}', f's_add_u32 {sA}, {sA}, {c*128}',
                     f's_add_u32 m0, {sF}, {self.XR + slot*8192}', (f'buffer_load_dwordx4 {vr(vXo0)}, {S_X}, {sA} offen lds', ('st', c))],
                    [f's_add_u32 m0, {sF}, {self.XR + slot*8192 + 1024}', 's_nop 0', (f'buffer_load_dwordx4 {vr(vXo1)}, {S_X}, {sA} offen lds', ('st', c))]]
        def g_w(c, sec, ldsbase, tag):
            return [[f's_cmp_le_u32 {thr}, {c}', f's_cselect_b32 {sA}, {Wb1}, {sE}', f's_add_u32 {sA}, {sA}, {c*64*3072 + sec*1024}',
                     f's_add_u32 m0, {sF}, {ldsbase}', (f'buffer_load_dwordx4 {vr(vWoff)}, {S_WQKV}, {sA} offen lds', tag)],
                    [f's_add_u32 m0, {sF}, {ldsbase + 1024}', f's_add_u32 {sA}, {sA}, {8*3072}', (f'buffer_load_dwordx4 {vr(vWoff)}, {S_WQKV}, {sA} offen lds', tag)]]
        def g_stage(c):
            slot = c % 4
            return g_x(c) + g_w(c, 1, self.KR + slot*8192, ('st', c)) + g_w(c, 2, self.VR + slot*8192, ('st', c))
        def wq_loc(cq):
            return (self.KR if cq % 2 == 0 else self.VR) + (cq // 2) * 8192
        def g_wq(cq):
            return g_w(cq, 0, wq_loc(cq), ('wq', cq))
        for g in g_stage(0): self.emit_group(g)
        self.srd(S_WPHI, 76, 32 * 256 * 2)
        e(f'v_lshrrev_b32 {vr(T0)}, 4, v1')
        e(f'v_lshlrev_b32 {vr(T0)}, 9, {vr(T0)}')
        e(f'v_and_b32 {vr(T1)}, 15, v1')
        e(f'v_lshl_add_u32 {vr(T0)}, {vr(T1)}, 1, {vr(T0)}')
        e(f'v_lshl_add_u32 {vr(T0)}, v2, 7, {vr(T0)}')
        for g in g_stage(1): self.emit_group(g)
        e(f's_lshl_b32 {sA}, {sJ}, 11')
        e(f's_lshl_b32 {sB}, {sHP}, 10')
        e(f's_add_u32 {sA}, {sA}, {sB}')
        for jj in range(8):
            d = (jj & 3) + 8 * (jj >> 2)
            e(f'buffer_load_ushort v{224+jj}, {vr(T0)}, {S_WPHI}, {sA} offen offset:{d*32}', tag='wphi')
        self.prologue2()
        self.stamp('x_pro')
        for g in g_stage(2): self.emit_group(g)
        self.part_store_addr(vr(vPART), vr(T0))
        e(f's_lshl_b32 {sA}, {sHP}, 1')
        e(f's_add_u32 {sA}, {sA}, {sT}')
        e(f'v_bfe_u32 {vr(T0)}, v1, 1, 3')
        e(f'v_xor_b32 {vr(T0)}, {vr(T0)}, v2')
        e(f's_lshl_b32 {sB}, {sA}, 1')
        e(f'v_xor_b32 {vr(T0)}, {sB}, {vr(T0)}')
        e(f'v_lshlrev_b32 {vr(T0)}, 4, {vr(T0)}')
        e(f'v_lshl_add_u32 {vr(T0)}, v1, 7, {vr(T0)}')
        e(f's_lshl_b32 {sB}, {sT}, 12')
        e(f'v_add_u32 {vr(vXa)}, {sB}, {vr(T0)}')
        for k in range(1, 4):
            e(f'v_xor_b32 {vr(vXa+k)}, {k*32}, {vr(vXa)}')
        self.tr_addr(vr(T0), vr(T1), 'v63', natural=True)
        e(f's_lshl_b32 {sB}, {sHP}, 6')
        e(f'v_xor_b32 {vr(T0)}, {sB}, {vr(T0)}')
        e(f's_lshl_b32 {sB}, {sA}, 11')
        e(f'v_add_u32 {vr(T0)}, {sB}, {vr(T0)}')
        for k in range(4):
            e(f'v_xor_b32 {vr(T1)}, {k*2048}, {vr(T0)}')
            e(f'v_add_u32 {vr(vKa+k)}, {self.KR}, {vr(T1)}')
            e(f'v_add_u32 {vr(vVa+k)}, {self.VR}, {vr(T1)}')
        for r in (vCK, vCV, vXS, vXQ):
            e(f'v_mov_b32 {vr(r)}, 0')
        for i in range(4): e(f'v_mov_b32 v{240+i}, -1')
        sFINc, sGc = 's36', 's37'
        e(f's_and_b32 {sB}, {sTB}, 1')
        e(f's_lshl_b32 {sC}, {sB}, 7')
        e(f's_add_u32 {sB}, {sB}, {sW}')
        e(f's_cmp_eq_u32 {sW}, 0')
        e(f's_cselect_b32 {sC}, {sC}, 256')
        e(f's_cselect_b32 {sB}, 1, {sB}')
        e(f's_add_u32 {sFINo}, {sFINo}, {sC}')
        e(f's_cmp_eq_u32 {sB}, 1')
        e(f's_cselect_b32 {sFINc}, {sFINo}, {WS_SIZE}')
        e(f's_cmp_eq_u32 {sG1}, 1')
        e(f's_cselect_b32 {sGc}, {sGst}, {WS_SIZE}')
        CL = 'v[240:243]'
        clears = [
            ['s_mov_b64 exec, 0xff', (f'buffer_store_dwordx4 {CL}, v3, {S_WS}, {sFINc} offen sc1', 'clr'), 's_mov_b64 exec, 0xffff',
             (f'buffer_store_dwordx4 {CL}, v3, {S_WS}, {sSTst} offen sc1', 'clr'), 's_mov_b64 exec, -1']]
        for so in (sOst, sHNst, sGc):
            for u in range(2):
                clears.append([(f'buffer_store_dwordx4 {CL}, v3, {S_WS}, {so} offen offset:{u*2048} sc1', 'clr')])
        if self.opts.get('noclear'): clears = []

        def reads(c):
            slot = c % 4
            wb = WB[c % 2]
            out = []
            for k in range(4):
                out.append(f'ds_read_b128 {vr(XF + 16*c + 4*k, 4)}, {vr(vXa+k)} offset:{slot*8192}')
                for a in range(2):
                    out.append(f'ds_read_b64_tr_b16 {vr(wb + 4*k + 2*a, 2)}, {vr(vKa+k)} offset:{slot*8192 + a*512}')
                for a in range(2):
                    out.append(f'ds_read_b64_tr_b16 {vr(wb + 16 + 4*k + 2*a, 2)}, {vr(vVa+k)} offset:{slot*8192 + a*512}')
            return out
        def mf(acc, A, B, first):
            return f'v_mfma_f32_32x32x16_bf16 {vr(acc,16)}, {vr(A,4)}, {vr(B,4)}, {"0" if first else vr(acc,16)}'

        self.stamp('x_issued')
        e.wait_vm([('st', 0)], 'lgkmcnt(0)')
        e(f's_add_u32 {sTAG}, {sTAG}, 1')
        e('s_barrier')
        self.stamp('p1_first')
        for r in reads(0): e(r)
        for c in range(8):
            wb = WB[c % 2]
            self.stamp(f'x_st{c}')
            e('s_waitcnt lgkmcnt(0)')
            m = []
            for k in range(4):
                m.append(mf(aK, wb + 4*k, XF + 16*c + 4*k, c == 0 and k == 0))
                m.append(mf(aV, wb + 16 + 4*k, XF + 16*c + 4*k, c == 0 and k == 0))
            if c <= 4: G = g_stage(c + 3); G1_, G2_ = G[:3], G[3:]
            elif c == 5: G1_, G2_ = clears[:3], clears[3:]
            elif c == 6: G1_, G2_ = [], g_wq(0) + g_wq(1)
            else: G = g_wq(2) + g_wq(3); G1_, G2_ = G, []
            for i in range(4):
                e(m[i])
                if i < len(G1_): self.emit_group(G1_[i])
            if c == 1:
                e.wait_vm(['wphi'])
                for i in range(4):
                    e(f'v_lshl_or_b32 {vr(vWP+i)}, v{224+2*i+1}, 16, v{224+2*i}')
            rd = []
            if c < 7:
                e.wait_vm([('st', c + 1)])
                e('s_barrier')
                rd = reads(c + 1)
            for i in range(4):
                e(m[4 + i])
                for r in rd[3*i:3*i+3]: e(r)
            fill = [[r] for r in rd[12:]]
            dots = []
            for k in (0, 2):
                for i in range(4):
                    dots.append(f'v_dot2c_f32_bf16 {vr(vCK)}, {sONES}, {vr(wb + 4*k + i)}')
                    dots.append(f'v_dot2c_f32_bf16 {vr(vCV)}, {sONES}, {vr(wb + 16 + 4*k + i)}')
            for k in (0, 1):
                for i in range(4):
                    x = vr(XF + 16*c + 4*k + i)
                    dots.append(f'v_dot2c_f32_bf16 {vr(vXS)}, {sONES}, {x}')
                    dots.append(f'v_dot2c_f32_bf16 {vr(vXQ)}, {x}, {x}')
            for g in fill: self.emit_group(g)
            n2 = len(G2_)
            for i, d in enumerate(dots):
                if n2 and i % (32 // n2) == 0 and i // (32 // n2) < n2:
                    self.emit_group(G2_[i // (32 // n2)])
                e(d)
        self.stamp('p1_mfma')
        e(f'v_permlane32_swap_b32 {vr(vCK)}, {vr(vCV)}')
        e(f'v_permlane32_swap_b32 {vr(vXS)}, {vr(vXQ)}')
        e(f's_lshl_b32 {sA}, {sHP}, 9')
        e(f's_lshl_b32 {sB}, {sT}, 8')
        e(f's_add_u32 {sB}, {sA}, {sB}')
        e(f'v_lshl_add_u32 {vr(T0)}, v0, 2, {sB}')
        e(f's_lshl_b32 {sC}, {sW}, 8')
        e(f'v_lshl_add_u32 {vr(T1)}, v0, 2, {sC}')
        e(f'v_add_f32 {vr(vCK)}, {vr(vCK)}, {vr(vCV)}')
        e(f'v_add_f32 {vr(vXS)}, {vr(vXS)}, {vr(vXQ)}')
        e(f'ds_write_b32 {vr(T0)}, {vr(vCK)} offset:{self.MISC}')
        e(f'ds_write_b32 {vr(T1)}, {vr(vXS)} offset:{self.MISC + 1024}')
        e(f'v_and_b32 {vr(T0)}, 3, v0')
        e(f'v_lshlrev_b32 {vr(T0)}, 9, {vr(T0)}')
        e(f'v_mov_b32 v8, {sONES}')
        e(f'v_mov_b32 v9, {sONES}')
        e(f'ds_write_b64 {vr(T0)}, v[8:9] offset:{self.MISC + 4096}')
        e(f'v_lshl_add_u32 {vr(T0)}, v2, 4, {sA}')
        e(f's_lshl_b32 {sB}, {sT}, 9')
        e(f'v_lshl_add_u32 {vr(T1)}, v1, 2, {sB}')
        e(f'v_add_u32 {vr(T1)}, {self.MISC + 1024}, {vr(T1)}')
        e('s_waitcnt lgkmcnt(0)')
        e('s_barrier')
        self.stamp('x_kvbar')
        CK0, CK1, CV0, CV1 = 64, 80, 96, 112
        e(f'ds_read2_b32 v[8:9], {vr(T1)} offset0:0 offset1:64')
        e(f'ds_read2_b32 v[10:11], {vr(T1)} offset0:32 offset1:96')
        for q in range(4):
            e(f'ds_read_b128 {vr(CK0 + 4*q, 4)}, {vr(T0)} offset:{self.MISC + q*32}')
            e(f'ds_read_b128 {vr(CK1 + 4*q, 4)}, {vr(T0)} offset:{self.MISC + 256 + q*32}')
        WA1, WA2 = 48, 4
        e('v_cmp_gt_u32 vcc, 16, v1')
        for i in range(4):
            e(f'v_cndmask_b32 {vr(WA1+i)}, 0, {vr(vWP+i)}, vcc')
        for i in range(4):
            e(f'v_sub_u32 {vr(WA2+i)}, {vr(vWP+i)}, {vr(WA1+i)}')
        vNM, vRS, vCS = 8, 10, 12
        e('s_waitcnt lgkmcnt(8)')
        for q in range(4):
            e(f'ds_read_b128 {vr(CV0 + 4*q, 4)}, {vr(T0)} offset:{self.MISC + 128 + q*32}')
            e(f'ds_read_b128 {vr(CV1 + 4*q, 4)}, {vr(T0)} offset:{self.MISC + 384 + q*32}')
        e('v_add_f32 v8, v8, v9')
        e('v_add_f32 v10, v10, v11')
        e(f'v_mul_f32 {vr(vNM)}, {fbits(-1.0/512)}, v8')
        e(f'v_mul_f32 {vr(T1)}, {vr(vNM)}, {vr(vNM)}')
        e(f's_mov_b32 {sC}, {fbits(1.0/512)}')
        e(f'v_fma_f32 {vr(T1)}, v10, {sC}, -{vr(T1)}')
        e(f'v_max_f32 {vr(T1)}, 0, {vr(T1)}')
        e(f'v_add_f32 {vr(T1)}, {fbits(1e-5)}, {vr(T1)}')
        e(f'v_rsq_f32 {vr(vRS)}, {vr(T1)}')
        e('s_waitcnt lgkmcnt(8)')
        for i in range(8):
            e(f'v_pk_fma_f32 {vr(aK+2*i,2)}, {vr(CK0+2*i,2)}, {vr(vNM,2)}, {vr(aK+2*i,2)} op_sel_hi:[1,0,1]')
        for i in range(8):
            e(f'v_pk_fma_f32 {vr(aK+2*i,2)}, {vr(CK1+2*i,2)}, {vr(vNM,2)}, {vr(aK+2*i,2)} op_sel_hi:[1,0,1]')
        KF = 80
        for i in range(8):
            e(f'v_cvt_pk_bf16_f32 {vr(KF+i)}, {vr(aK+2*i)}, {vr(aK+2*i+1)}')
        e(f'v_mul_f32 {vr(vCS)}, {fbits(LOG2E)}, {vr(vRS)}')
        P = 16
        e(f'v_mfma_f32_32x32x16_bf16 {vr(P,16)}, {vr(WA1,4)}, {vr(KF,4)}, 0')
        WQ2 = g_wq(4) + g_wq(5) + g_wq(6) + g_wq(7)
        self.emit_group(WQ2[0])
        e(f'v_mfma_f32_32x32x16_bf16 {vr(P,16)}, {vr(WA2,4)}, {vr(KF+4,4)}, {vr(P,16)}')
        self.emit_group(WQ2[1])
        vPW0, vPW1, vVW = 60, 61, 63
        self.pk_write_addr(vr(vPW0), vr(vPW1), vr(T0))
        e(f's_lshl_b32 {sC}, {sHP}, 13')
        e(f's_lshl_b32 {sB}, {sT}, 11')
        e(f's_add_u32 {sC}, {sC}, {sB}')
        e(f's_add_u32 {sC}, {sC}, {self.PKB}')
        e(f'v_add_u32 {vr(vPW0)}, {sC}, {vr(vPW0)}')
        e(f'v_add_u32 {vr(vPW1)}, {sC}, {vr(vPW1)}')
        e(f'v_bfe_u32 {vr(T0)}, v1, 2, 1')
        e(f'v_xor_b32 {vr(T0)}, {vr(T0)}, v2')
        e(f'v_lshlrev_b32 {vr(T0)}, 4, {vr(T0)}')
        e(f'v_lshl_add_u32 {vr(T0)}, v1, 5, {vr(T0)}')
        e(f's_lshl_b32 {sC}, {sHP}, 12')
        e(f's_lshl_b32 {sB}, {sT}, 10')
        e(f's_add_u32 {sC}, {sC}, {sB}')
        e(f's_add_u32 {sC}, {sC}, {self.VVB}')
        e(f'v_add_u32 {vr(vVW)}, {sC}, {vr(T0)}')
        e('s_waitcnt lgkmcnt(0)')
        for i in range(8):
            e(f'v_pk_add_f32 {vr(CV0+2*i,2)}, {vr(CV0+2*i,2)}, {vr(CV1+2*i,2)}')
        self.emit_group(WQ2[2])
        for i in range(8):
            e(f'v_pk_fma_f32 {vr(aV+2*i,2)}, {vr(CV0+2*i,2)}, {vr(vNM,2)}, {vr(aV+2*i,2)} op_sel_hi:[1,0,1]')
        for i in range(8):
            e(f'v_pk_mul_f32 {vr(aV+2*i,2)}, {vr(aV+2*i,2)}, {vr(vRS,2)} op_sel_hi:[1,0]')
        self.emit_group(WQ2[3])
        VF = 112
        for i in range(8):
            e(f'v_cvt_pk_bf16_f32 {vr(VF+i)}, {vr(aV+2*i)}, {vr(aV+2*i+1)}')
        e(f'ds_write_b128 {vr(vVW)}, {vr(VF,4)}')
        e(f'ds_write_b128 {vr(vVW)}, {vr(VF+4,4)} offset:2048')
        self.stamp('x_presm')
        FK = 96
        self.softmax(P, 32, 64, vCS, FK, WQ2[4:])
        e(f'ds_write_b128 {vr(vPW0)}, {vr(FK,4)}')
        e(f'ds_write_b128 {vr(vPW1)}, {vr(FK+4,4)}')
        e(f'ds_write_b128 {vr(vPW0)}, {vr(FK+8,4)} offset:4096')
        e(f'ds_write_b128 {vr(vPW1)}, {vr(FK+12,4)} offset:4096')
        self.stamp('x_postsm')
        self.pk_read_addr(vr(64), vr(65), vr(T0), vr(T1))
        e(f's_lshl_b32 {sA}, {sW}, 12')
        e(f's_add_u32 {sA}, {sA}, {self.PKB}')
        e(f'v_add_u32 {vr(66)}, {sA}, {vr(64)}')
        e(f'v_add_u32 {vr(67)}, {sA}, {vr(65)}')
        e(f'v_bfe_u32 {vr(T0)}, v0, 2, 2')
        e(f'v_lshl_add_u32 {vr(T0)}, v2, 3, {vr(T0)}')
        e(f'v_lshlrev_b32 {vr(T0)}, 5, {vr(T0)}')
        e(f'v_and_b32 {vr(T1)}, 1, v0')
        e(f'v_lshl_add_u32 {vr(T0)}, {vr(T1)}, 4, {vr(T0)}')
        e(f'v_bfe_u32 {vr(T1)}, v0, 1, 1')
        e(f'v_lshl_add_u32 {vr(T0)}, {vr(T1)}, 3, {vr(T0)}')
        e(f's_lshl_b32 {sA}, {sW}, 11')
        e(f's_add_u32 {sA}, {sA}, {self.VVB}')
        e(f'v_add_u32 {vr(68)}, {sA}, {vr(T0)}')
        e(f'v_xor_b32 {vr(69)}, 16, {vr(68)}')
        e(f'v_add_u32 {vr(69)}, 128, {vr(69)}')
        e(f'v_mov_b32 {vr(T0)}, {self.MISC + 4096}')
        e(f'v_cndmask_b32 {vr(68)}, {vr(T0)}, {vr(68)}, vcc')
        e(f'v_cndmask_b32 {vr(69)}, {vr(T0)}, {vr(69)}, vcc')
        e.wait_vm([('wq', i) for i in range(4)] + ['clr'], 'lgkmcnt(0)')
        e('s_barrier')
        AF, BF = 72, 16
        for u in range(4):
            e(f'ds_read_b64_tr_b16 {vr(AF+4*u,2)}, v66 offset:{u*1024}')
            e(f'ds_read_b64_tr_b16 {vr(AF+4*u+2,2)}, v67 offset:{u*1024}')
            e(f'ds_read_b64_tr_b16 {vr(BF+4*u,2)}, v68 offset:{u*512}')
            e(f'ds_read_b64_tr_b16 {vr(BF+4*u+2,2)}, v69 offset:{u*512}')
        TB_ = ['s36', 's37', 's38', 's39']
        for i in range(4): e(f's_bfe_u32 {TB_[i]}, {sTAG}, {hex((8 << 16) | (8 * i))}')
        e(f'v_mov_b32 {vr(T0)}, 0xffffff00')
        for u in range(4):
            e(f's_waitcnt lgkmcnt({12-4*u})')
            e(f'v_mfma_f32_32x32x16_bf16 {vr(32,16)}, {vr(AF+4*u,4)}, {vr(BF+4*u,4)}, {"0" if u == 0 else vr(32,16)}')
        e(f's_mov_b32 {sC}, 49152')
        e(f's_lshr_b32 {sA}, s2, 4')
        e(f's_lshl_b32 {sA}, {sA}, 8')
        e(f's_and_b32 {sB}, s2, 15')
        e(f's_lshl_b32 {sB}, {sB}, 2')
        e(f's_add_u32 {sA}, {sA}, {sB}')
        e(f's_add_u32 {sA}, {sA}, {WS_FLAG}')
        e(f's_cmp_eq_u32 {sW}, 3')
        e(f's_cselect_b32 {sA}, {sA}, {WS_SIZE}')
        self.set_exec(*self.EXEC_PART)
        for q in range(4):
            for i in range(4):
                e(f'v_and_or_b32 {vr(32+4*q+i)}, {vr(32+4*q+i)}, {vr(T0)}, {TB_[i]}')
            e(f'buffer_store_dwordx4 {vr(32+4*q,4)}, {vr(vPART)}, {S_WS}, {"0" if q < 2 else sC} offen offset:{(q&1)*128} sc1', tag='part')
        e(f'v_mov_b32 {vr(T0)}, {sTAG}')
        e(f'v_mov_b32 {vr(T1)}, 0')
        e('s_mov_b64 exec, 1')
        e(f'buffer_store_dword {vr(T0)}, {vr(T1)}, {S_WS}, {sA} offen sc1', tag='flag')
        self.full_exec()
        self.stamp('p1_pub')
        aQ = 16; vCQ = 14
        QB = [64, 80]
        def qr(cq):
            base = vKa if cq % 2 == 0 else vVa
            off = (cq // 2) * 8192
            return [f'ds_read_b64_tr_b16 {vr(QB[cq%2] + 4*k + 2*a, 2)}, {vr(base+k)} offset:{off + a*512}' for k in range(4) for a in range(2)]
        for r in qr(0): e(r)
        self.w_src_off(vr(self.vSRCO), 1024, 'v14', 'v15')
        e(f'v_mov_b32 {vr(vCQ)}, 0')
        WOG = []
        for s_ in range(8): WOG += self.bg_dma('wo', s_, 1, s_)
        self.owner_setup()
        for cq in range(8):
            if cq == 3:
                e.wait_vm([('wq', i) for i in range(4, 8)], 'lgkmcnt(0)')
                e('s_barrier')
            else:
                e('s_waitcnt lgkmcnt(0)')
            rd = qr(cq + 1) if cq < 7 else []
            for k in range(4):
                e(mf(aQ, QB[cq%2] + 4*k, XF + 16*cq + 4*k, cq == 0 and k == 0))
                for r in rd[2*k:2*k+2]: e(r)
                if cq < 4: self.emit_group(WOG[4*cq + k])
            if cq == int(self.opts.get('ownq', 5)):
                self.owner_issue()
            for i in range(16):
                e(f'v_dot2c_f32_bf16 {vr(vCQ)}, {sONES}, {vr(QB[cq%2] + i)}')
        e(f'v_mov_b32 {vr(T1)}, {vr(vCQ)}')
        e(f's_lshl_b32 {sA}, {sW}, 7')
        e(f's_add_u32 {sA}, {sA}, {self.MISC + 2048}')
        e(f'v_permlane32_swap_b32 {vr(vCQ)}, {vr(T1)}')
        e(f'v_lshl_add_u32 v60, v1, 2, {sA}')
        e(f'v_lshl_add_u32 v61, v2, 4, {sA}')
        e(f'v_add_f32 {vr(vCQ)}, {vr(vCQ)}, {vr(T1)}')
        e(f'ds_write_b32 v60, {vr(vCQ)}')
        e('s_waitcnt lgkmcnt(0)')
        for q in range(4): e(f'ds_read_b128 {vr(64 + 4*q, 4)}, v61 offset:{q*32}')
        self.stamp('q_mfma')
        self.owner_duty()
        self.stamp('owner')
        self.bg_setup()
        e('s_waitcnt lgkmcnt(0)')
        self.bg_block([('wo', s_, 1, s_, 192 + 8*s_) for s_ in range(8)], [], 'b: wo -> agpr')
        W1G = []
        for s_ in range(8): W1G += self.bg_dma('w1', s_, 1, s_)
        for i in range(8):
            e(f'v_pk_fma_f32 {vr(aQ+2*i,2)}, {vr(64+2*i,2)}, {vr(vNM,2)}, {vr(aQ+2*i,2)} op_sel_hi:[1,0,1]')
        for i in range(8):
            e(f'v_cvt_pk_bf16_f32 {vr(KF+i)}, {vr(aQ+2*i)}, {vr(aQ+2*i+1)}')
        e(f'v_mfma_f32_32x32x16_bf16 {vr(P,16)}, {vr(WA1,4)}, {vr(KF,4)}, 0')
        self.emit_group(W1G[0])
        e(f'v_mfma_f32_32x32x16_bf16 {vr(P,16)}, {vr(WA2,4)}, {vr(KF+4,4)}, {vr(P,16)}')
        self.emit_group(W1G[1])
        vFR = 60
        e(f'v_min_u32 {vr(T0)}, 16, v1')
        e(f'v_lshlrev_b32 {vr(T0)}, 4, {vr(T0)}')
        e(f'v_lshl_add_u32 {vr(vFR)}, v2, 9, {vr(T0)}')
        e(f's_lshl_b32 {sD}, {sJ}, 13')
        e(f's_lshl_b32 {sB}, {sHP}, 12')
        e(f's_add_u32 {sD}, {sD}, {sB}')
        e(f's_add_u32 {sD}, {sD}, {WS_FIN}')
        self.softmax(P, 32, 64, vCS, FK, W1G[2:])
        self.stamp('q_soft')
        e('s_barrier')
        KV = 64
        lp, ld = e.newlabel('fin'), e.newlabel('find')
        e(f's_mov_b32 {sCNT}, 0')
        e.label(lp)
        for i in range(4):
            e(f'buffer_load_dwordx4 {vr(KV+4*i,4)}, {vr(vFR)}, {S_WS}, {sD} offen offset:{i*1024} sc1')
        e.wait_vm0()
        e(f'v_max3_u32 {vr(T0)}, {vr(KV)}, {vr(KV+4)}, {vr(KV+8)}')
        e(f'v_max_u32 {vr(T0)}, {vr(T0)}, {vr(KV+12)}')
        e(f'v_cmp_eq_u32 vcc, -1, {vr(T0)}')
        e(f's_cbranch_vccz {ld}')
        e(f's_add_u32 {sCNT}, {sCNT}, 1')
        e(f's_cmp_lt_u32 {sCNT}, {SPIN_MAX}')
        e(f's_cbranch_scc1 {lp}')
        e.label(ld)
        self.stamp('fin')
        D0, D1 = 16, 32
        e(f'v_mfma_f32_32x32x16_bf16 {vr(D0,16)}, {vr(KV,4)}, {vr(FK,4)}, 0')
        e(f'v_mfma_f32_32x32x16_bf16 {vr(D1,16)}, {vr(KV+8,4)}, {vr(FK+8,4)}, 0')
        e(f'v_mfma_f32_32x32x16_bf16 {vr(D0,16)}, {vr(KV+4,4)}, {vr(FK+4,4)}, {vr(D0,16)}')
        e(f'v_mfma_f32_32x32x16_bf16 {vr(D1,16)}, {vr(KV+12,4)}, {vr(FK+12,4)}, {vr(D1,16)}')
        for h, D in enumerate((D0, D1)):
            e(f'v_add_f32 {vr(D+8)}, {fbits(1e-6)}, {vr(D+8)}')
            e(f'v_rcp_f32 {vr(D+8)}, {vr(D+8)}')
            for i in range(4):
                e(f'v_pk_mul_f32 {vr(D+2*i,2)}, {vr(D+2*i,2)}, {vr(D+8,2)} op_sel_hi:[1,0]')
            for i in range(4):
                e(f'v_cvt_pk_bf16_f32 {vr(D+12+i)}, {vr(D+2*i)}, {vr(D+2*i+1)}')
            e(f'buffer_store_dwordx4 {vr(D+12,4)}, v3, {S_WS}, {sOst} offen offset:{h*2048} sc1', tag='o')
        self.stamp('o_pub')

    def tr_addr(self, v, t1, t2, natural):
        e = self.e
        e(f'v_bfe_u32 {t1}, v0, 2, 2')
        e(f'v_lshl_add_u32 {v}, v2, {3 if natural else 2}, {t1}')
        e(f'v_lshlrev_b32 {v}, 7, {v}')
        e(f'v_lshrrev_b32 {t1}, 1, {t1}')
        e(f'v_lshl_add_u32 {v}, {t1}, 6, {v}')
        e(f'v_bfe_u32 {t1}, v0, 4, 1')
        e(f'v_lshl_add_u32 {v}, {t1}, 5, {v}')
        e(f'v_and_b32 {t1}, 3, v0')
        e(f'v_lshl_add_u32 {v}, {t1}, 3, {v}')

    def pk_write_addr(self, v0_, v1_, t):
        e = self.e
        e(f'v_bfe_u32 {t}, v1, 1, 2')
        e(f'v_lshlrev_b32 {v0_}, 1, v2')
        e(f'v_xor_b32 {t}, {t}, {v0_}')
        e(f'v_lshlrev_b32 {t}, 4, {t}')
        e(f'v_lshl_add_u32 {v0_}, v1, 6, {t}')
        e(f'v_xor_b32 {v1_}, 16, {v0_}')

    def pk_read_addr(self, v0_, v1_, t0, t1):
        e = self.e
        e(f'v_bfe_u32 {t0}, v0, 2, 2')
        e(f'v_lshl_add_u32 {v0_}, v2, 3, {t0}')
        e(f'v_lshlrev_b32 {v0_}, 6, {v0_}')
        e(f'v_lshrrev_b32 {t0}, 1, {t0}')
        e(f'v_bfe_u32 {t1}, v0, 4, 1')
        e(f'v_xor_b32 {t0}, {t0}, {t1}')
        e(f'v_and_b32 {t1}, 1, v0')
        e(f'v_lshl_add_u32 {t0}, {t1}, 1, {t0}')
        e(f'v_lshl_add_u32 {v0_}, {t0}, 4, {v0_}')
        e(f'v_bfe_u32 {t1}, v0, 1, 1')
        e(f'v_lshl_add_u32 {v0_}, {t1}, 3, {v0_}')
        e(f'v_xor_b32 {v1_}, 32, {v0_}')
        e(f'v_add_u32 {v1_}, 256, {v1_}')

    def softmax(self, P, N, T, vCS, F, fill=()):
        e0 = self.e
        fill = list(fill)
        cnt = [0]
        every = max(1, 150 // (len(fill) + 1))
        def e(x):
            e0(x)
            cnt[0] += 1
            if fill and cnt[0] % every == 0:
                self.emit_group(fill.pop(0))
        mxA, mxB, mnA, mnB = T, T + 2, T + 4, T + 6
        t0, t1 = T + 1, T + 3
        for (dst, base, op) in ((mxA, P, 'max'), (mxB, P + 8, 'max'), (mnA, P, 'min'), (mnB, P + 8, 'min')):
            e(f'v_{op}3_f32 {vr(dst)}, {vr(base)}, {vr(base+1)}, {vr(base+2)}')
        for (dst, base, op) in ((mxA, P, 'max'), (mxB, P + 8, 'max'), (mnA, P, 'min'), (mnB, P + 8, 'min')):
            e(f'v_{op}3_f32 {vr(dst)}, {vr(dst)}, {vr(base+3)}, {vr(base+4)}')
        for (dst, base, op) in ((mxA, P, 'max'), (mxB, P + 8, 'max'), (mnA, P, 'min'), (mnB, P + 8, 'min')):
            e(f'v_{op}3_f32 {vr(dst)}, {vr(dst)}, {vr(base+5)}, {vr(base+6)}')
        for (dst, base, op) in ((mxA, P, 'max'), (mxB, P + 8, 'max'), (mnA, P, 'min'), (mnB, P + 8, 'min')):
            e(f'v_{op}_f32 {vr(dst)}, {vr(dst)}, {vr(base+7)}')
        def allred2(a, b, c, d, op1, op2):
            e(f'v_permlane32_swap_b32 {vr(a)}, {vr(b)}')
            e(f'v_permlane32_swap_b32 {vr(c)}, {vr(d)}')
            e(f'v_{op1}_f32 {vr(a)}, {vr(a)}, {vr(b)}')
            e(f'v_{op2}_f32 {vr(c)}, {vr(c)}, {vr(d)}')
            e(f'v_mov_b32 {vr(b)}, {vr(a)}')
            e(f'v_mov_b32 {vr(d)}, {vr(c)}')
            e(f'v_permlane32_swap_b32 {vr(a)}, {vr(b)}')
            e(f'v_permlane32_swap_b32 {vr(c)}, {vr(d)}')
        allred2(mxA, mxB, mnA, mnB, 'max', 'min')
        for r in (mxA, mxB, mnA, mnB):
            e(f'v_mul_f32 {vr(r)}, {vr(vCS)}, {vr(r)}')
        for h, (mx, mn) in enumerate(((mxA, mnA), (mxB, mnB))):
            for i in range(4):
                p = P + 8*h + 2*i
                e(f'v_pk_fma_f32 {vr(N+8*h+2*i,2)}, {vr(p,2)}, {vr(vCS,2)}, {vr(mn,2)} op_sel_hi:[1,0,0] neg_lo:[0,1,0] neg_hi:[0,1,0]')
            for i in range(4):
                p = P + 8*h + 2*i
                e(f'v_pk_fma_f32 {vr(p,2)}, {vr(p,2)}, {vr(vCS,2)}, {vr(mx,2)} op_sel_hi:[1,0,0] neg_lo:[0,0,1] neg_hi:[0,0,1]')
        for i in range(16):
            e(f'v_exp_f32 {vr(P+i)}, {vr(P+i)}')
        for i in range(16):
            e(f'v_exp_f32 {vr(N+i)}, {vr(N+i)}')
        sums = ((T, P), (T + 2, P + 8), (T + 4, N), (T + 6, N + 8))
        for k, (s, b) in enumerate(sums):
            e(f'v_pk_add_f32 {vr(s,2)}, {vr(b,2)}, {vr(b+2,2)}')
            e(f'v_pk_add_f32 {vr(T+8+2*k,2)}, {vr(b+4,2)}, {vr(b+6,2)}')
        for k, (s, b) in enumerate(sums):
            e(f'v_pk_add_f32 {vr(s,2)}, {vr(s,2)}, {vr(T+8+2*k,2)}')
        for k, (s, b) in enumerate(sums):
            e(f'v_add_f32 {vr(s)}, {vr(s)}, {vr(s+1)}')
        allred2(T, T + 2, T + 4, T + 6, 'add', 'add')
        for k in range(4):
            e(f'v_rcp_f32 {vr(T+2*k)}, {vr(T+2*k)}')
        outs = (F, F + 8, F + 4, F + 12)
        for k, (s, b) in enumerate(sums):
            for i in range(4):
                e(f'v_pk_mul_f32 {vr(b+2*i,2)}, {vr(b+2*i,2)}, {vr(s,2)} op_sel_hi:[1,0]')
        for k, (s, b) in enumerate(sums):
            for i in range(4):
                e(f'v_cvt_pk_bf16_f32 {vr(outs[k]+i)}, {vr(b+2*i)}, {vr(b+2*i+1)}')
        while fill: self.emit_group(fill.pop(0))

    OWN_R = 128
    def owner_setup(self):
        e = self.e
        e(f's_lshl_b32 {sA}, {sJ}, 4')
        e(f's_lshr_b32 {sB}, {sTB}, 1')
        e(f's_add_u32 {sA}, {sA}, {sB}')
        e(f's_mul_i32 {sA}, {sA}, 3')
        e(f's_and_b32 {sC}, {sTB}, 1')
        e(f's_add_u32 {sB}, {sC}, {sW}')
        e(f's_cmp_eq_u32 {sB}, 1')
        e(f's_cselect_b32 s68, 2, 0')
        e(f's_cmp_eq_u32 {sW}, 0')
        e(f's_cselect_b32 s68, 1, s68')
        e(f's_cselect_b32 {sC}, {sC}, 2')
        e(f's_add_u32 {sA}, {sA}, {sC}')
        e(f's_lshl_b32 {sA}, {sA}, 13')
        e(f's_add_u32 {sAb0}, {sA}, {WS_PART}')
        e(f's_add_u32 {sAb1}, {sAb0}, 4096')
        e(f'v_lshlrev_b32 v121, 8, v1')
        e(f'v_lshl_add_u32 v121, v2, 7, v121')
    def own_loads_kv(self):
        for i in range(8):
            self.e(f'buffer_load_dwordx4 {vr(self.OWN_R+4*i,4)}, v3, {S_WS}, {sAb0 if i < 4 else sAb1} offen offset:{(i&3)*1024} sc1')
    def own_loads_z(self):
        self.e(f'buffer_load_dwordx4 {vr(self.OWN_R,4)}, v121, {S_WS}, {sAb0} offen sc1')
    def owner_issue(self):
        e = self.e
        save = list(e.vm)
        lz, lend = e.newlabel('oiz'), e.newlabel('oiend')
        e('s_cmp_eq_u32 s68, 1')
        e(f's_cbranch_scc0 {lz}')
        self.own_loads_kv()
        e(f's_branch {lend}')
        e.label(lz)
        e('s_cmp_eq_u32 s68, 2')
        e(f's_cbranch_scc0 {lend}')
        self.own_loads_z()
        e.label(lend)
        e.vm = save
    def owner_duty(self):
        e = self.e
        R = self.OWN_R
        save = list(e.vm)
        lz, lend = e.newlabel('ownz'), e.newlabel('ownend')
        e('s_cmp_eq_u32 s68, 1')
        e(f's_cbranch_scc0 {lz}')
        lp, ld = e.newlabel('own'), e.newlabel('ownd')
        e(f's_mov_b32 {sCNT}, 0')
        e.label(lp)
        e.wait_vm0()
        e(f'v_xor_b32 v14, s36, {vr(R)}')
        for i in range(1, 8):
            e(f'v_bitop3_b32 v14, v14, {vr(R+4*i)}, s36 bitop3:0xf6')
        e('v_and_b32 v14, 0xff, v14')
        e('v_cmp_ne_u32 vcc, 0, v14')
        e(f's_cbranch_vccz {ld}')
        self.own_loads_kv()
        e(f's_add_u32 {sCNT}, {sCNT}, 1')
        e(f's_cmp_lt_u32 {sCNT}, {SPIN_MAX}')
        e(f's_cbranch_scc1 {lp}')
        e.wait_vm0()
        e.label(ld)
        for step in (16, 8, 4):
            for i in range(0, step, 2):
                e(f'v_pk_add_f32 {vr(R+i,2)}, {vr(R+i,2)}, {vr(R+step+i,2)}')
        for sw in ('32', '16'):
            for i in range(4): e(f'v_mov_b32 {vr(R+4+i)}, {vr(R+i)}')
            for i in range(4): e(f'v_permlane{sw}_swap_b32 {vr(R+i)}, {vr(R+4+i)}')
            for i in range(0, 4, 2): e(f'v_pk_add_f32 {vr(R+i,2)}, {vr(R+i,2)}, {vr(R+4+i,2)}')
        e(f'v_cvt_pk_bf16_f32 {vr(R+8)}, {vr(R)}, {vr(R+1)}')
        e(f'v_cvt_pk_bf16_f32 {vr(R+9)}, {vr(R+2)}, {vr(R+3)}')
        e(f'v_mov_b32_dpp {vr(R+10)}, {vr(R+8)} row_shl:8 row_mask:0xf bank_mask:0xf')
        e(f'v_mov_b32_dpp {vr(R+11)}, {vr(R+9)} row_shl:8 row_mask:0xf bank_mask:0xf')
        e('s_mov_b64 exec, 0xff')
        e(f'buffer_store_dwordx4 {vr(R+8,4)}, v3, {S_WS}, {sFINo} offen sc1')
        self.full_exec()
        e(f's_branch {lend}')
        e.label(lz)
        e('s_cmp_eq_u32 s68, 2')
        e(f's_cbranch_scc0 {lend}')
        lp, ld = e.newlabel('ownzp'), e.newlabel('ownzd')
        e(f's_mov_b32 {sCNT}, 0')
        e.label(lp)
        e.wait_vm0()
        e(f'v_xor_b32 v14, s36, {vr(R)}')
        for i in range(1, 4):
            e(f'v_bitop3_b32 v14, v14, {vr(R+i)}, s{36+i} bitop3:0xf6')
        e('v_and_b32 v14, 0xff, v14')
        e('v_cmp_ne_u32 vcc, 0, v14')
        e(f's_cbranch_vccz {ld}')
        self.own_loads_z()
        e(f's_add_u32 {sCNT}, {sCNT}, 1')
        e(f's_cmp_lt_u32 {sCNT}, {SPIN_MAX}')
        e(f's_cbranch_scc1 {lp}')
        e.wait_vm0()
        e.label(ld)
        for ror in (8, 4, 2, 1):
            for i in range(4):
                e(f'v_add_f32_dpp {vr(R+i)}, {vr(R+i)}, {vr(R+i)} row_ror:{ror} row_mask:0xf bank_mask:0xf')
        for i in range(4): e(f'v_mov_b32 {vr(R+4+i)}, {vr(R+i)}')
        for i in range(4): e(f'v_permlane16_swap_b32 {vr(R+i)}, {vr(R+4+i)}')
        for i in range(0, 4, 2): e(f'v_pk_add_f32 {vr(R+i,2)}, {vr(R+i,2)}, {vr(R+4+i,2)}')
        e(f'v_cvt_pk_bf16_f32 {vr(R+8)}, {vr(R)}, {vr(R+1)}')
        e(f'v_cvt_pk_bf16_f32 {vr(R+9)}, {vr(R+2)}, {vr(R+3)}')
        e(f'v_mov_b32 {vr(R+10)}, {vr(R+8)}')
        e(f'v_mov_b32 {vr(R+11)}, {vr(R+9)}')
        e(f'v_permlane32_swap_b32 {vr(R+8)}, {vr(R+10)}')
        e(f'v_permlane32_swap_b32 {vr(R+9)}, {vr(R+11)}')
        e('s_mov_b64 exec, 1')
        e(f'buffer_store_dwordx4 {vr(R+8,4)}, v3, {S_WS}, {sFINo} offen sc1')
        self.full_exec()
        e.label(lend)
        e.vm = save

    RING = 8
    ACC = 16
    WF = 80
    AR = 128
    def gemm_setup(self, name, nsteps, thr, set_base, hint_blocks):
        e = self.e
        vA0, vA1, vH = 7, 8, 9
        set_base()
        e(f's_sub_u32 {sA}, {nsteps}, {thr}')
        e(f's_lshl_b32 {sA}, {sA}, 11')
        e(f's_add_u32 {sAb0}, {sD}, {sA}')
        e(f's_sub_u32 {sAb1}, {sAb0}, {nsteps*2048}')
        e(f's_lshl_b32 {sA}, {sWB}, 10')
        e(f'v_add_u32 {vr(vA0)}, {sA}, v3')
        e(f'v_xor_b32 {vr(vA1)}, 1024, {vr(vA0)}')
        hint_blocks(vr(vH), 'v14')
        e(f'v_lshlrev_b32 {vr(vH)}, 10, {vr(vH)}')

    def gemm(self, name, stream, nsteps, wsrc, w_is_A, inloop=None, after_hint=None, pair=2, post_mfma=None):
        e = self.e
        ACC, WF, AR, RING = self.ACC, self.WF, self.AR, self.RING
        vA0, vA1, vH, vCHK, T0 = 7, 8, 9, 10, 14
        thr = self.STREAMS[stream][2][2]
        inloop = inloop or {}
        def ld_a(s):
            r = AR + (s % RING) * 8
            pre = []
            if s % pair == 0:
                pre = [f's_cmp_le_u32 {thr}, {s}', f's_cselect_b32 {sC}, {sAb1}, {sAb0}', f's_add_u32 {sC}, {sC}, {s*2048}']
            o = (s % pair) * 2048
            return [pre + [(f'buffer_load_dwordx4 {vr(r,4)}, {vr(vA0)}, {S_WS}, {sC} offen offset:{o} sc1', ('a', s))],
                    [(f'buffer_load_dwordx4 {vr(r+4,4)}, {vr(vA1)}, {S_WS}, {sC} offen offset:{o} sc1', ('a', s))]]
        def trs(s):
            if s >= nsteps or wsrc[s][0] == 'a': return []
            return self.tr_list(stream, wsrc[s][1], wsrc[s][2], ('v', WF + (s % 2) * 8))
        def wreg(s, t):
            if wsrc[s][0] == 'a': return f'a[{wsrc[s][1]+4*t}:{wsrc[s][1]+4*t+3}]'
            return vr(WF + (s % 2) * 8 + 4*t, 4)
        def hint_poll():
            lp, ld = e.newlabel(name + '_h'), e.newlabel(name + '_hd')
            e(f's_mov_b32 {sCNT}, 0')
            e.label(lp)
            e(f'buffer_load_dword {vr(T0)}, {vr(vH)}, {S_WS}, {sD} offen sc1')
            e.wait_vm0()
            e(f'v_cmp_eq_u32 vcc, -1, {vr(T0)}')
            e(f's_cbranch_vccz {ld}')
            e(f's_add_u32 {sCNT}, {sCNT}, 1')
            e(f's_cmp_lt_u32 {sCNT}, {SPIN_MAX}')
            e(f's_cbranch_scc1 {lp}')
            e.label(ld)
        def body(first):
            hint_poll()
            if first: self.stamp(name + '_hint')
            for s in range(min(RING, nsteps)):
                for g in ld_a(s): self.emit_group(g)
            if after_hint: after_hint()
            for r in trs(0): e(r)
            e(f'v_mov_b32 {vr(vCHK)}, 0')
            for s in range(nsteps):
                a = AR + (s % RING) * 8
                need = [('a', s), (stream, s + 1)]
                e.wait_vm(need, 'lgkmcnt(0)' if wsrc[s][0] == 'l' else '')
                nxt = trs(s + 1)
                la = ld_a(s + RING) if s + RING < nsteps else []
                extra = list(inloop.get(s, [])) if first else []
                k = 0
                for (ta, tb_) in ((0, 0), (1, 0), (0, 1), (1, 1)):
                    acc = ACC + 16 * (2 * ta + tb_)
                    W_, A_ = wreg(s, ta), vr(a + 4*tb_, 4)
                    A, B = (W_, A_) if w_is_A else (A_, W_)
                    e(f'v_mfma_f32_32x32x16_bf16 {vr(acc,16)}, {A}, {B}, {"0" if s == 0 else vr(acc,16)}')
                    if k == 0:
                        for r in nxt: e(r)
                        e(f'v_max3_u32 {vr(vCHK)}, {vr(vCHK)}, {vr(a)}, {vr(a+4)}')
                    if k == 1 and la: self.emit_group(la[0])
                    if k == 3 and la: self.emit_group(la[1])
                    if k in (0, 2) and extra: self.emit_group(extra.pop(0))
                    k += 1
                for g in extra: self.emit_group(g)
        body(True)
        lok, lredo = e.newlabel(name + '_ok'), e.newlabel(name + '_redo')
        e(f'v_cmp_eq_u32 vcc, -1, {vr(vCHK)}')
        e(f's_cbranch_vccnz {lredo}')
        e.label(lok)
        save_vm = list(e.vm)
        self.cold_code.append((name, lredo, lok, stream, nsteps, wsrc, w_is_A, inloop))
        self.stamp(name + '_mfma')
        vRW = 4
        for i in range(1, 4):
            e(f's_xor_b32 {sB}, {sW}, {i}')
            e(f's_mul_i32 {sB}, {sB}, {3*4096}')
            e(f's_add_u32 {sB}, {sB}, {self.RED + (i-1)*4096}')
            e(f'v_add_u32 {vr(vRW+i)}, {sB}, v3')
        for i in range(1, 4):
            for q in range(4):
                e(f'ds_write_b128 {vr(vRW+i)}, {vr(ACC + 16*i + 4*q, 4)} offset:{q*1024}')
        e(f's_mul_i32 {sB}, {sW}, {3*4096}')
        e(f's_add_u32 {sB}, {sB}, {self.RED}')
        e(f'v_add_u32 {vr(vRW)}, {sB}, v3')
        if post_mfma: post_mfma()
        e('s_waitcnt lgkmcnt(0)')
        e('s_barrier')
        for i in range(1, 4):
            for q in range(4):
                e(f'ds_read_b128 {vr(ACC + 16*i + 4*q, 4)}, {vr(vRW)} offset:{(i-1)*4096 + q*1024}')
        for i in range(1, 4):
            e(f's_waitcnt lgkmcnt({4*(3-i)})')
            for k in range(8):
                e(f'v_pk_add_f32 {vr(ACC+2*k,2)}, {vr(ACC+2*k,2)}, {vr(ACC+16*i+2*k,2)}')
        self.stamp(name + '_red')

    def redo_code(self, name, lredo, lok, stream, nsteps, wsrc, w_is_A, inloop):
        e = self.e
        ACC, WF, AR = self.ACC, self.WF, self.AR
        srd, pitch, B = self.STREAMS[stream]
        vsrc = {'wo': self.vSRCO, 'w1': self.vSRC1, 'w2': self.vSRC2}[stream]
        nat = stream == 'w1'
        e.label(lredo)
        e('s_waitcnt vmcnt(0) lgkmcnt(0)')
        e('s_nop 15')
        va = self.vTRN if nat else self.vTRP
        e(f's_lshl_b32 {sB}, {sW}, 11')
        e(f's_add_u32 {sB}, {sB}, {self.TRB}')
        e(f's_sub_u32 {sA}, {sB}, {sSTG}')
        e(f'v_add_u32 v12, {sA}, {vr(va)}')
        e(f'v_add_u32 v13, {sA}, {vr(va+1)}')
        for i in range(64): e(f'v_mov_b32 {vr(ACC+i)}, 0')
        e('s_mov_b32 s38, 0')
        ll, lw, lg = e.newlabel('rl'), e.newlabel('rw'), e.newlabel('rg')
        e.label(ll)
        e(f's_cmp_le_u32 {B[2]}, s38')
        e(f's_cselect_b32 {sA}, {B[1]}, {B[0]}')
        e(f's_cselect_b32 {sC}, {sAb1}, {sAb0}')
        e(f's_mul_i32 s39, s38, {16*pitch}')
        e(f's_add_u32 {sA}, {sA}, s39')
        e(f's_lshl_b32 s39, s38, 11')
        e(f's_add_u32 {sC}, {sC}, s39')
        e(f's_mov_b32 m0, {sB}')
        e('s_nop 0')
        e(f'buffer_load_dwordx4 {vr(vsrc)}, {srd}, {sA} offen lds')
        e(f's_add_u32 m0, {sB}, 1024')
        e(f's_add_u32 {sA}, {sA}, {8*pitch}')
        e(f'buffer_load_dwordx4 {vr(vsrc)}, {srd}, {sA} offen lds')
        e(f's_mov_b32 {sCNT}, 0')
        e.label(lw)
        e(f'buffer_load_dwordx4 {vr(AR,4)}, v7, {S_WS}, {sC} offen sc1')
        e(f'buffer_load_dwordx4 {vr(AR+4,4)}, v8, {S_WS}, {sC} offen sc1')
        e('s_waitcnt vmcnt(0)')
        e(f'v_max_u32 v14, {vr(AR)}, {vr(AR+4)}')
        e('v_cmp_eq_u32 vcc, -1, v14')
        e(f's_cbranch_vccz {lg}')
        e(f's_add_u32 {sCNT}, {sCNT}, 1')
        e(f's_cmp_lt_u32 {sCNT}, {SPIN_MAX}')
        e(f's_cbranch_scc1 {lw}')
        e.label(lg)
        astep = 512 if nat else 1024
        for t in range(2):
            for a in range(2):
                e(f'ds_read_b64_tr_b16 {vr(WF+4*t+2*a,2)}, v{12+t} offset:{a*astep}')
        e('s_waitcnt lgkmcnt(0)')
        for ta in range(2):
            for tb_ in range(2):
                acc = ACC + 16 * (2 * ta + tb_)
                W_, A_ = vr(WF + 4*ta, 4), vr(AR + 4*tb_, 4)
                A, Bq = (W_, A_) if w_is_A else (A_, W_)
                e(f'v_mfma_f32_32x32x16_bf16 {vr(acc,16)}, {A}, {Bq}, {vr(acc,16)}')
        e('s_add_u32 s38, s38, 1')
        e(f's_cmp_lt_u32 s38, {nsteps}')
        e(f's_cbranch_scc1 {ll}')
        e('s_nop 15')
        e(f's_branch {lok}')

    def p2(self):
        e = self.e
        XRES = 96
        vFL = 124
        e('v_lshrrev_b32 v14, 2, v0')
        e('v_lshlrev_b32 v14, 8, v14')
        e('v_and_b32 v15, 3, v0')
        e('v_lshl_add_u32 v11, v15, 4, v14')
        e(f'v_add_u32 v11, {WS_FLAG}, v11')
        e(f'buffer_load_dwordx4 {vr(vFL,4)}, v11, {S_WS}, 0 offen sc1', tag='fl')
        e(f's_lshl_b32 {sA}, {sTB}, 16')
        e(f's_lshl_b32 {sB}, {sWB}, 15')
        e(f's_add_u32 {sA}, {sA}, {sB}')
        e(f's_lshl_b32 {sB}, {sJ}, 7')
        e(f's_add_u32 {sA}, {sA}, {sB}')
        e(f's_lshl_b32 {sB}, {sWA}, 6')
        e(f's_add_u32 {sA}, {sA}, {sB}')
        e(f'v_lshlrev_b32 v14, 10, v1')
        e(f'v_lshl_add_u32 v14, v2, 3, v14')
        for q in range(4):
            e(f'buffer_load_dwordx2 {vr(XRES+2*q,2)}, v14, {S_X}, {sA} offen offset:{q*16}', tag='xres')
        self.bg_block([('w1', s, 1, s, 8*s) for s in range(8)], [('w1', 8+s, 1, s) for s in range(8)], 'c')
        def base():
            e(f's_lshl_b32 {sD}, {sTB}, 16')
            e(f's_lshl_b32 {sB}, {sW}, 14')
            e(f's_add_u32 {sD}, {sD}, {sB}')
            e(f's_add_u32 {sD}, {sD}, {WS_O}')
        def hint(v, t):
            e(f'v_and_b32 {v}, 7, v0')
            e(f'v_lshrrev_b32 {t}, 1, {v}')
            e(f'v_lshlrev_b32 {t}, 2, {t}')
            e(f'v_and_b32 {v}, 1, {v}')
            e(f'v_add3_u32 {v}, {v}, {t}, 2')
        self.gemm_setup('p2', 8, WO_B[2], base, hint)
        lp, ld = e.newlabel('ichk'), e.newlabel('ichkd')
        e.wait_vm(['fl'])
        save = list(e.vm)
        e(f's_mov_b32 {sCNT}, 0')
        e.label(lp)
        e(f'v_xor_b32 v14, {sTAG}, {vr(vFL)}')
        for i in range(1, 4):
            e(f'v_bitop3_b32 v14, v14, {vr(vFL+i)}, {sTAG} bitop3:0xf6')
        e('v_cmp_ne_u32 vcc, 0, v14')
        e(f's_cbranch_vccz {ld}')
        e(f'buffer_load_dwordx4 {vr(vFL,4)}, v11, {S_WS}, 0 offen sc1')
        e('s_waitcnt vmcnt(0)')
        e(f's_add_u32 {sCNT}, {sCNT}, 1')
        e(f's_cmp_lt_u32 {sCNT}, {SPIN_MAX}')
        e(f's_cbranch_scc1 {lp}')
        e.label(ld)
        le = e.newlabel('noep')
        e(f's_lshl_b32 {sA}, s2, 2')
        e(f's_add_u32 {sA}, {sA}, {sW}')
        e(f's_cmp_eq_u32 {sA}, 3')
        e(f's_cbranch_scc0 {le}')
        e(f'v_mov_b32 {vr(vFL)}, {sTAG}')
        e(f'v_mov_b32 {vr(vFL+1)}, 0')
        e('s_mov_b64 exec, 1')
        e(f'buffer_store_dword {vr(vFL)}, {vr(vFL+1)}, {S_WS}, 0 offen sc1')
        self.full_exec()
        e.label(le)
        e.vm = save
        self.stamp('ichk')
        self.gemm('p2', 'wo', 8, [('a', 192 + 8*s) for s in range(8)], True, pair=1)
        ACC = self.ACC
        HB = 32
        for i in range(8):
            e(f'v_lshlrev_b32 {vr(48+2*i)}, 16, {vr(XRES+i)}')
            e(f'v_and_b32 {vr(48+2*i+1)}, 0xffff0000, {vr(XRES+i)}')
        for i in range(8):
            e(f'v_pk_add_f32 {vr(ACC+2*i,2)}, {vr(ACC+2*i,2)}, {vr(48+2*i,2)}')
        for i in range(8):
            e(f'v_cvt_pk_bf16_f32 {vr(HB+i)}, {vr(ACC+2*i)}, {vr(ACC+2*i+1)}')
        e('v_mov_b32 v40, 0')
        e('v_mov_b32 v41, 0')
        for i in range(8):
            e(f'v_dot2c_f32_bf16 v40, {sONES}, {vr(HB+i)}')
            e(f'v_dot2c_f32_bf16 v41, {vr(HB+i)}, {vr(HB+i)}')
        e('v_lshlrev_b32 v13, 3, v1')
        e('v_mov_b32 v42, v40')
        e('v_mov_b32 v43, v41')
        e('v_permlane32_swap_b32 v40, v42')
        e('v_permlane32_swap_b32 v41, v43')
        e('v_pk_add_f32 v[40:41], v[40:41], v[42:43]')
        self.set_exec('-1', '0')
        e(f'buffer_store_dwordx2 v[40:41], v13, {S_WS}, {sSTst} offen sc1')
        self.full_exec()
        e(f's_lshl_b32 {sA}, {sTB}, 3')
        e(f's_add_u32 {sA}, {sA}, {sJ}')
        e(f's_lshl_b32 {sA}, {sA}, 2')
        e(f's_add_u32 {sA}, {sA}, {sW}')
        e(f's_lshl_b32 {sA}, {sA}, 11')
        e(f's_add_u32 {sA}, {sA}, {WS_H}')
        e(f'buffer_store_dwordx4 {vr(HB,4)}, v3, {S_WS}, {sA} offen sc1')
        e(f'buffer_store_dwordx4 {vr(HB+4,4)}, v3, {S_WS}, {sA} offen offset:1024 sc1')
        self.stamp('stat_pub')
        self.bg_block([('w1', 8+s, 1, s, 64 + 8*s) for s in range(8)], [('w1', 16+s, 1, s) for s in range(8)], 'd')
        for i in range(8):
            e(f'v_lshlrev_b32 {vr(ACC+2*i)}, 16, {vr(HB+i)}')
            e(f'v_and_b32 {vr(ACC+2*i+1)}, 0xffff0000, {vr(HB+i)}')
        e(f's_lshl_b32 {sD}, {sTB}, 1')
        e(f's_add_u32 {sD}, {sD}, {sWB}')
        e(f's_lshl_b32 {sD}, {sD}, 12')
        e(f's_add_u32 {sD}, {sD}, {WS_STAT}')
        e('v_lshl_add_u32 v14, v2, 11, v13')
        vW0, vW1, vR0, vR1 = 4, 5, 6, 7
        self.pk_write_addr(vr(vW0), vr(vW1), 'v15')
        self.pk_read_addr(vr(vR0), vr(vR1), 'v15', 'v8')
        e(f's_lshl_b32 {sA}, {sW}, 11')
        e(f's_add_u32 {sA}, {sA}, {self.TRB}')
        for r in (vW0, vW1, vR0, vR1):
            e(f'v_add_u32 {vr(r)}, {sA}, {vr(r)}')
        ST = 48
        lp, ld = e.newlabel('st'), e.newlabel('std')
        e(f's_mov_b32 {sCNT}, 0')
        e.label(lp)
        for i in range(8):
            e(f'buffer_load_dwordx2 {vr(ST+2*i,2)}, v14, {S_WS}, {sD} offen offset:{i*256} sc1')
        e.wait_vm0()
        e(f'v_max3_u32 v8, {vr(ST+1)}, {vr(ST+3)}, {vr(ST+5)}')
        e(f'v_max3_u32 v9, {vr(ST+7)}, {vr(ST+9)}, {vr(ST+11)}')
        e(f'v_max3_u32 v8, v8, {vr(ST+13)}, {vr(ST+15)}')
        e('v_max_u32 v8, v8, v9')
        e('v_cmp_eq_u32 vcc, -1, v8')
        e(f's_cbranch_vccz {ld}')
        e(f's_add_u32 {sCNT}, {sCNT}, 1')
        e(f's_cmp_lt_u32 {sCNT}, {SPIN_MAX}')
        e(f's_cbranch_scc1 {lp}')
        e.label(ld)
        self.stamp('stat_got')
        for step in (8, 4, 2):
            for i in range(0, step, 2):
                e(f'v_pk_add_f32 {vr(ST+i,2)}, {vr(ST+i,2)}, {vr(ST+step+i,2)}')
        e(f'v_mov_b32 {vr(ST+2)}, {vr(ST)}')
        e(f'v_mov_b32 {vr(ST+3)}, {vr(ST+1)}')
        e(f'v_permlane32_swap_b32 {vr(ST)}, {vr(ST+2)}')
        e(f'v_permlane32_swap_b32 {vr(ST+1)}, {vr(ST+3)}')
        e(f'v_pk_add_f32 {vr(ST,2)}, {vr(ST,2)}, {vr(ST+2,2)}')
        e(f's_mov_b32 {sC}, {fbits(1.0/512)}')
        e(f'v_mul_f32 v8, {fbits(-1.0/512)}, {vr(ST)}')
        e('v_mul_f32 v9, v8, v8')
        e(f'v_fma_f32 v9, {vr(ST+1)}, {sC}, -v9')
        e('v_max_f32 v9, 0, v9')
        e(f'v_add_f32 v10, {fbits(1e-5)}, v9')
        e('v_rsq_f32 v10, v10')
        e(f's_mov_b32 {sC}, {fbits(1e-5)}')
        e('v_mul_f32 v11, v10, v10')
        e(f'v_fma_f32 v11, v11, v9, {sC}')
        e('v_rsq_f32 v11, v11')
        e('v_mul_f32 v10, v10, v11')
        e('v_mul_f32 v8, v8, v10')
        for i in range(8):
            e(f'v_pk_fma_f32 {vr(ACC+2*i,2)}, {vr(ACC+2*i,2)}, v[10:11], v[8:9] op_sel_hi:[1,0,0]')
        for i in range(8):
            e(f'v_cvt_pk_bf16_f32 {vr(HB+i)}, {vr(ACC+2*i)}, {vr(ACC+2*i+1)}')
        e(f'ds_write_b128 {vr(vW0)}, {vr(HB,4)}')
        e(f'ds_write_b128 {vr(vW1)}, {vr(HB+4,4)}')
        e('s_waitcnt lgkmcnt(0)')
        for u in range(2):
            e(f'ds_read_b64_tr_b16 {vr(48+4*u,2)}, {vr(vR0)} offset:{u*1024}')
            e(f'ds_read_b64_tr_b16 {vr(48+4*u+2,2)}, {vr(vR1)} offset:{u*1024}')
        for u in range(2):
            e(f's_waitcnt lgkmcnt({2-2*u})')
            e(f'buffer_store_dwordx4 {vr(48+4*u,4)}, v3, {S_WS}, {sHNst} offen offset:{u*2048} sc1')
        self.stamp('hn_pub')

    def g1(self):
        e = self.e
        BR = 96
        e(f's_lshl_b32 {sA}, {sFB}, 7')
        e(f's_lshl_b32 {sB}, {sWA}, 6')
        e(f's_add_u32 {sA}, {sA}, {sB}')
        e('v_lshlrev_b32 v14, 3, v2')
        for q in range(4):
            e(f'buffer_load_dwordx2 {vr(BR+2*q,2)}, v14, {S_B1}, {sA} offen offset:{q*16}', tag='b1')
        self.bg_block([('w1', 16+s, 1, s, 128 + 8*s) for s in range(8)],
                      [('w1', 24+s, 1, s) for s in range(8)] + [('w2', s, 2, s) for s in range(5)], 'e')
        e('s_barrier')
        lskip, lj = e.newlabel('g1skip'), e.newlabel('g1join')
        e(f's_cmp_eq_u32 {sG1}, 0')
        e(f's_cbranch_scc1 {lskip}')
        vm0 = list(e.vm)
        def base():
            e(f's_lshl_b32 {sD}, {sDB}, 18')
            e(f's_lshl_b32 {sB}, {sW}, 16')
            e(f's_add_u32 {sD}, {sD}, {sB}')
            e(f's_add_u32 {sD}, {sD}, {WS_HN}')
        def hint(v, t):
            e(f'v_lshrrev_b32 {t}, 1, v1')
            e(f'v_lshlrev_b32 {t}, 2, {t}')
            e(f'v_and_b32 {v}, 1, v1')
            e(f'v_add3_u32 {v}, {v}, {t}, 2')
        self.gemm_setup('g1', 32, W1_B[2], base, hint)
        wsrc = [('a', 8*s) for s in range(24)] + [('l', 1, s) for s in range(8)]
        inl = {24 + s: self.bg_dma('w2', 5 + s, 1, s) for s in range(8)}
        blk_f = ([('w2', s, 2, s, 8*s) for s in range(5)], [('w2', 13+s, 2, s) for s in range(5)])
        self.gemm('g1', 'w1', 32, wsrc, True, inloop=inl, post_mfma=lambda: self.bg_block(blk_f[0], [], 'f'))
        ACC = self.ACC
        e0 = e
        fill = [g for d in blk_f[1] for g in self.bg_dma(*d)]
        cnt = [0]
        def e(x, tag=None):
            e0(x, tag=tag)
            cnt[0] += 1
            if fill and cnt[0] % 9 == 0: self.emit_group(fill.pop(0))
        for i in range(8):
            e(f'v_lshlrev_b32 {vr(48+2*i)}, 16, {vr(BR+i)}')
            e(f'v_and_b32 {vr(48+2*i+1)}, 0xffff0000, {vr(BR+i)}')
        k1 = -2.0 * 0.7978845608028654 * LOG2E
        k2 = k1 * 0.044715
        e(f's_mov_b32 s68, {fbits(k1)}')
        e(f's_mov_b32 s69, {fbits(k1)}')
        e(f'v_mov_b32 v8, {fbits(k2)}')
        e('v_mov_b32 v10, 1.0')
        U, Z = ACC, 32
        for i in range(8):
            e(f'v_pk_add_f32 {vr(U+2*i,2)}, {vr(U+2*i,2)}, {vr(48+2*i,2)}')
        for i in range(8):
            e(f'v_pk_mul_f32 {vr(Z+2*i,2)}, {vr(U+2*i,2)}, {vr(U+2*i,2)}')
        for i in range(8):
            e(f'v_pk_fma_f32 {vr(Z+2*i,2)}, {vr(Z+2*i,2)}, v[8:9], s[68:69] op_sel_hi:[1,0,1]')
        for i in range(8):
            e(f'v_pk_mul_f32 {vr(Z+2*i,2)}, {vr(Z+2*i,2)}, {vr(U+2*i,2)}')
        for u in range(2):
            for i in range(8): e(f'v_exp_f32 {vr(Z+8*u+i)}, {vr(Z+8*u+i)}')
            for i in range(4): e(f'v_pk_add_f32 {vr(Z+8*u+2*i,2)}, {vr(Z+8*u+2*i,2)}, v[10:11] op_sel_hi:[1,0]')
            for i in range(8): e(f'v_rcp_f32 {vr(Z+8*u+i)}, {vr(Z+8*u+i)}')
            for i in range(4): e(f'v_pk_mul_f32 {vr(Z+8*u+2*i,2)}, {vr(Z+8*u+2*i,2)}, {vr(U+8*u+2*i,2)}')
            for i in range(4): e(f'v_cvt_pk_bf16_f32 {vr(48+4*u+i)}, {vr(Z+8*u+2*i)}, {vr(Z+8*u+2*i+1)}')
            e(f'buffer_store_dwordx4 {vr(48+4*u,4)}, v3, {S_WS}, {sGst} offen offset:{u*2048} sc1')
        e = e0
        while fill: self.emit_group(fill.pop(0))
        e(f's_branch {lj}')
        vm1 = list(e.vm)
        e.label(lskip)
        e.vm = vm0
        e.wait_vm0()
        for s in range(8):
            for g in inl[24 + s]: self.emit_group(g)
        self.bg_block(*blk_f, 'f (idle wg)')
        e.wait_vm0()
        e.label(lj)
        e.vm = vm1
        self.stamp('g_pub')

    def g2(self):
        e = self.e
        HR = 96; vB2 = 104
        e(f's_lshl_b32 {sA}, {sSB}, 7')
        e(f's_lshl_b32 {sB}, {sWA}, 6')
        e(f's_add_u32 {sA}, {sA}, {sB}')
        e('v_lshlrev_b32 v14, 1, v1')
        e(f'buffer_load_ushort {vr(vB2)}, v14, {S_B2}, {sA} offen', tag='b2')
        self.bg_block([('w2', 5+s, 1, s, 40 + 8*s) for s in range(8)], [('w2', 18+s, 1, s) for s in range(8)], 'g')
        e('s_barrier')
        def base():
            e(f's_mul_i32 {sD}, {sDB}, {112*2048}')
            e(f's_mul_i32 {sB}, {sW}, {28*2048}')
            e(f's_add_u32 {sD}, {sD}, {sB}')
            e(f's_add_u32 {sD}, {sD}, {WS_G}')
        def hint(v, t):
            e(f'v_min_u32 {v}, 27, v1')
            e(f'v_lshrrev_b32 {t}, 1, {v}')
            e(f'v_lshlrev_b32 {t}, 2, {t}')
            e(f'v_and_b32 {v}, 1, {v}')
            e(f'v_add3_u32 {v}, {v}, {t}, 2')
        def hload():
            e(f's_lshl_b32 {sA}, {sSB}, 3')
            e(f's_add_u32 {sA}, {sA}, {sDB}')
            e(f's_lshl_b32 {sA}, {sA}, 1')
            e(f's_add_u32 {sA}, {sA}, {sWB}')
            e(f's_lshl_b32 {sA}, {sA}, 1')
            e(f's_add_u32 {sA}, {sA}, {sWA}')
            e(f's_lshl_b32 {sA}, {sA}, 11')
            e(f's_add_u32 {sA}, {sA}, {WS_H}')
            e(f'buffer_load_dwordx4 {vr(HR,4)}, v3, {S_WS}, {sA} offen sc1', tag='h')
            e(f'buffer_load_dwordx4 {vr(HR+4,4)}, v3, {S_WS}, {sA} offen offset:1024 sc1', tag='h')
        self.gemm_setup('g2', 28, W2_B[2], base, hint)
        wsrc = [('a', 8*s) for s in range(13)] + [('l', 2, s) for s in range(5)] + [('l', 1, s) for s in range(8)] + [('l', 2, 0), ('l', 2, 1)]
        inl = {13: self.bg_dma('w2', 26, 2, 0), 14: self.bg_dma('w2', 27, 2, 1)}
        self.gemm('g2', 'w2', 28, wsrc, False, inloop=inl, after_hint=hload)
        ACC = self.ACC
        e(f's_lshl_b32 {sA}, {sSB}, 16')
        e(f's_lshl_b32 {sB}, {sWA}, 15')
        e(f's_add_u32 {sA}, {sA}, {sB}')
        e(f's_lshl_b32 {sB}, {sDB}, 7')
        e(f's_add_u32 {sA}, {sA}, {sB}')
        e(f's_lshl_b32 {sB}, {sWB}, 6')
        e(f's_add_u32 {sA}, {sA}, {sB}')
        e('v_lshlrev_b32 v14, 10, v1')
        e('v_lshl_add_u32 v14, v2, 4, v14')
        e.wait_vm0()
        e(f'v_lshlrev_b32 v8, 16, {vr(vB2)}')
        for i in range(8):
            e(f'v_lshlrev_b32 {vr(48+2*i)}, 16, {vr(HR+i)}')
            e(f'v_and_b32 {vr(48+2*i+1)}, 0xffff0000, {vr(HR+i)}')
        for i in range(8):
            e(f'v_pk_add_f32 {vr(ACC+2*i,2)}, {vr(ACC+2*i,2)}, v[8:9] op_sel_hi:[1,0]')
        for i in range(8):
            e(f'v_pk_add_f32 {vr(ACC+2*i,2)}, {vr(ACC+2*i,2)}, {vr(48+2*i,2)}')
        for i in range(8):
            e(f'v_cvt_pk_bf16_f32 {vr(32+i)}, {vr(ACC+2*i)}, {vr(ACC+2*i+1)}')
        for p in range(2):
            e(f'v_permlane32_swap_b32 {vr(32+4*p)}, {vr(32+4*p+2)}')
            e(f'v_permlane32_swap_b32 {vr(32+4*p+1)}, {vr(32+4*p+3)}')
        for p in range(2):
            e(f'buffer_store_dwordx4 {vr(32+4*p,4)}, v14, {S_OUT}, {sA} offen offset:{p*32}')
        self.stamp('out')

    def epilogue(self):
        e = self.e
        if self.stamps:
            e('s_waitcnt vmcnt(0)')
            self.stamp('drain')
            e('s_memtime s[4:5]')
            e('s_waitcnt lgkmcnt(0)')
            e('s_sub_u32 s71, s4, s71')
            e(f's_lshl_b32 {sA}, s2, 2')
            e(f's_add_u32 {sA}, {sA}, {sW}')
            e(f's_lshl_b32 {sA}, {sA}, 7')
            e(f's_add_u32 {sA}, {sA}, {WS_STAMP}')
            e('v_mov_b32 v4, 0')
            e('v_mov_b32 v5, s71')
            e(f'buffer_store_dword v5, v4, {S_WS}, {sA} offen offset:124')
            for i in range(self.nstamp):
                e(f'v_mov_b32 v5, s{STAMP0+i}')
                e('s_mov_b64 exec, 1')
                e(f'buffer_store_dword v5, v4, {S_WS}, {sA} offen offset:{4*i}')
                e('s_mov_b64 exec, -1')
        e.label('L_end')
        e('s_endpgm')
        for c in self.cold_code: self.redo_code(*c)

    def build(self):
        self.prologue()
        self.p1()
        if self.stop_after != 'p1':
            self.p2()
            if self.stop_after != 'p2':
                self.g1()
                if self.stop_after != 'g1':
                    self.g2()
        self.epilogue()
        assert STAMP0 + self.nstamp <= 100
        hdr = f'''; Fused persistent kernel: LN -> QKV -> hedgehog linear attention -> Wo -> LN,LN -> token-mixing MLP
; @launch grid=(256,1,1) block=(256,1,1) lds=163840
.amdgcn_target "amdgcn-amd-amdhsa--gfx950"
.text
.globl {KNAME}
.p2align 8
.type {KNAME},@function
{KNAME}:
'''
        tail = f'''.section .rodata,"a"
.p2align 6
.amdhsa_kernel {KNAME}
  .amdhsa_next_free_vgpr 512
  .amdhsa_next_free_sgpr 102
  .amdhsa_accum_offset 256
  .amdhsa_group_segment_fixed_size 0
  .amdhsa_kernarg_size 96
  .amdhsa_user_sgpr_count 2
  .amdhsa_user_sgpr_kernarg_segment_ptr 1
  .amdhsa_system_sgpr_workgroup_id_x 1
  .amdhsa_float_denorm_mode_32 3
.end_amdhsa_kernel
'''
        return hdr + self.e.text() + tail


if __name__ == '__main__':
    import argparse
    ap = argparse.ArgumentParser()
    ap.add_argument('-o', default='k.s')
    ap.add_argument('--stamps', action='store_true')
    ap.add_argument('--stop', default=None)
    ap.add_argument('--opt', action='append', default=[])
    a = ap.parse_args()
    opts = dict((o.split('=') + ['1'])[:2] for o in a.opt)
    g = Gen(stamps=a.stamps, stop_after=a.stop, opts=opts)
    s = g.build()
    open(a.o, 'w').write(s)
    if a.stamps:
        open(a.o + '.stamps', 'w').write('\n'.join(g.stamp_names))
    print('wrote', a.o, 'lines', s.count('\n'), 'nops inserted', g.e.nops)
```
